```python
import torch

def _softmax(x, axis=-1):
    return torch.softmax(x, dim=axis)
def _gelu(x):
    return torch.nn.functional.gelu(x, approximate="tanh")
def _silu(x):
    return torch.nn.functional.silu(x)
def _sigmoid(x):
    return torch.sigmoid(x)
def _layernorm(x, axis=-1, eps=1e-5):
    m = x.mean(dim=axis, keepdim=True)
    v = x.var(dim=axis, keepdim=True, unbiased=False)
    return (x - m) / torch.sqrt(v + eps)
def _scatter_add(tgt, idx, src, axis=0):
    return tgt.clone().index_add_(axis, idx, src)
def _segment_sum(src, seg, n):
    out = torch.zeros((n,) + src.shape[1:], dtype=src.dtype)
    return out.index_add_(0, seg, src)
def _pad(x, pw):
    flat = tuple(v for pair in reversed(pw) for v in pair)
    return torch.nn.functional.pad(x, flat)

kernel_name = 'interleave_layers__sliding_local_dilated__linear_kernel_hedgehog__prompt'

def setup_inputs():

    _w = (lambda a: (lambda t: t.to(torch.bfloat16) if t.is_floating_point() else t)(torch.as_tensor(a)))
    def _A_setup():
        B, S, D = 1, 2048, 576
        return {
            "x": _w((lambda *s: torch.randn(*s, dtype=torch.bfloat16) * 0.05)(B, S, D)),
            "wqkv": _w((lambda *s: torch.randn(*s, dtype=torch.bfloat16) * 0.05)(D, 3 * D)),
            "wo": _w((lambda *s: torch.randn(*s, dtype=torch.bfloat16) * 0.05)(D, D)),
        }
    _A_in = _A_setup()

    def _B_setup():
        B, S, D, H = 1, 2048, 576, 32
        Dh = D // H
        return {
            "x": _w((lambda *s: torch.randn(*s, dtype=torch.bfloat16) * 0.05)(B, S, D)),
            "wqkv": _w((lambda *s: torch.randn(*s, dtype=torch.bfloat16) * 0.4)(D, 3 * D)),
            "w_phi": _w((lambda *s: torch.randn(*s, dtype=torch.bfloat16) * 0.4)(H, Dh, Dh) * (Dh ** -0.5)),
            "wo": _w((lambda *s: torch.randn(*s, dtype=torch.bfloat16) * 0.1)(D, D)),
        }
    _B_in = _B_setup()

    return {
        "A_x": _A_in["x"],
        "A_wqkv": _A_in["wqkv"],
        "A_wo": _A_in["wo"],
        "B_x": _B_in["x"],
        "B_wqkv": _B_in["wqkv"],
        "B_w_phi": _B_in["w_phi"],
        "B_wo": _B_in["wo"],
    }

def reference(A_x, A_wqkv, A_wo, B_x, B_wqkv, B_w_phi, B_wo):
    def _A_ref(x, wqkv, wo):
        B, S, D = x.shape
        H = 32; Dh = D // H
        W, dil = 8, 2
        qkv = (lambda x, *d: x.permute(*d))((x @ wqkv).reshape(B, S, 3, H, Dh), 2, 0, 3, 1, 4)
        q, k, v = qkv[0], qkv[1], qkv[2]
        scale = Dh ** -0.5
        pos = torch.arange(S)
        off = torch.arange(W) * dil
        idx = pos[:, None] - off[None, :]
        mask = idx >= 0
        idx_c = torch.where(mask, idx, 0).reshape(-1)
        kg = k[:, :, idx_c, :].reshape(B, H, S, W, Dh)
        vg = v[:, :, idx_c, :].reshape(B, H, S, W, Dh)
        logits = torch.einsum("bhsd,bhswd->bhsw", q, kg) * scale
        logits = torch.where(mask[None, None, :, :], logits, -1e9)
        attn = _softmax(logits, axis=-1)
        o = torch.einsum("bhsw,bhswd->bhsd", attn, vg)
        return (lambda x, *d: x.permute(*d))(o, 0, 2, 1, 3).reshape(B, S, D) @ wo

    def _B_ref(x, wqkv, w_phi, wo):
        B, S, D = x.shape
        H = 32; Dh = D // H
        qkv = (lambda x, *d: x.permute(*d))((x @ wqkv).reshape(B, S, 3, H, Dh), 2, 0, 3, 1, 4)
        q, k, v = qkv[0], qkv[1], qkv[2]
        pq = torch.einsum("bhsd,hdf->bhsf", q, w_phi)
        pk = torch.einsum("bhsd,hdf->bhsf", k, w_phi)
        phi_q = torch.concatenate([_softmax(pq, axis=-1), _softmax(-pq, axis=-1)], axis=-1)
        phi_k = torch.concatenate([_softmax(pk, axis=-1), _softmax(-pk, axis=-1)], axis=-1)
        kv = torch.einsum("bhsf,bhsd->bhfd", phi_k, v)
        z  = torch.einsum("bhsf->bhf", phi_k)
        num = torch.einsum("bhqf,bhfd->bhqd", phi_q, kv)
        den = torch.einsum("bhqf,bhf->bhq", phi_q, z)[..., None] + 1e-6
        o = num / den
        return (lambda x, *d: x.permute(*d))(o, 0, 2, 1, 3).reshape(B, S, D) @ wo

    x = A_x
    x = x + _A_ref(_layernorm(x, axis=-1), A_wqkv, A_wo)
    x = x + _B_ref(_layernorm(x, axis=-1), B_wqkv, B_w_phi, B_wo)
    x = x + _A_ref(_layernorm(x, axis=-1), A_wqkv, A_wo)
    x = x + _B_ref(_layernorm(x, axis=-1), B_wqkv, B_w_phi, B_wo)
    return x
```

```python
import re

TRANS = ("v_exp_f32","v_log_f32","v_rcp_f32","v_rsq_f32","v_sqrt_f32","v_sin_f32","v_cos_f32","v_rcp_iflag_f32")

def v(n): return f"v{n}"
def a(n): return f"a{n}"
def s(n): return f"s{n}"
def vr(n, c): return f"v[{n}:{n+c-1}]" if c > 1 else f"v{n}"
def ar(n, c): return f"a[{n}:{n+c-1}]" if c > 1 else f"a{n}"
def sr(n, c): return f"s[{n}:{n+c-1}]" if c > 1 else f"s{n}"

_reg1 = re.compile(r"^([vas])(\d+)$")
_regr = re.compile(r"^([vas])\[(\d+):(\d+)\]$")

def regs_of(tok):
    t = tok.strip()
    t = t.lstrip("-")
    if t.startswith("|") and t.endswith("|"): t = t[1:-1]
    if t.startswith("abs(") and t.endswith(")"): t = t[4:-1]
    if t.startswith("neg(") and t.endswith(")"): t = t[4:-1]
    m = _reg1.match(t)
    if m: return [(m.group(1), int(m.group(2)))]
    m = _regr.match(t)
    if m: return [(m.group(1), i) for i in range(int(m.group(2)), int(m.group(3)) + 1)]
    if t == "vcc": return [("s", "vcc_lo"), ("s", "vcc_hi")]
    if t in ("vcc_lo", "vcc_hi"): return [("s", t)]
    if t == "exec": return [("s", "exec_lo"), ("s", "exec_hi")]
    if t in ("exec_lo", "exec_hi"): return [("s", t)]
    if t == "m0": return [("s", "m0")]
    return []

class Ins:
    __slots__ = ("text","op","ops","mods","dst","src","kind","passes","srcA","srcB","srcC","states","isdpp","sdwa")
    def __init__(self, text):
        self.text = text
        t = text.split(";")[0].strip()
        self.states = 1
        self.srcA = self.srcB = self.srcC = []
        self.passes = 0
        self.isdpp = False; self.sdwa = False
        if not t or t.endswith(":") or t.startswith("."):
            self.op = None; self.kind = "label" if t.endswith(":") else "none"; self.dst = []; self.src = []; self.ops=[]; self.states = 0
            return
        parts = t.split(None, 1)
        self.op = op = parts[0]
        rest = parts[1] if len(parts) > 1 else ""
        ops = []; cur = ""; depth = 0
        for ch in rest:
            if ch in "[(": depth += 1
            if ch in "])": depth -= 1
            if ch == "," and depth == 0: ops.append(cur.strip()); cur = ""
            else: cur += ch
        if cur.strip(): ops.append(cur.strip())
        mods = ""
        if ops:
            last = ops[-1].split(None, 1)
            ops[-1] = last[0]
            mods = last[1] if len(last) > 1 else ""
        self.ops = ops; self.mods = mods
        R = [regs_of(o) for o in ops]
        allsrc = lambda lst: [r for x in lst for r in x]
        self.dst = []; self.src = []
        if op.startswith("v_mfma"):
            self.kind = "mfma"
            self.dst = R[0]; self.srcA = R[1]; self.srcB = R[2]; self.srcC = R[3] if len(R) > 3 else []
            self.src = self.srcA + self.srcB + self.srcC
            if "32x32x16" in op or "32x32x8" in op: self.passes = 8
            elif "16x16x32" in op or "16x16x16" in op: self.passes = 4
            elif "4x4x4" in op: self.passes = 2
            else: raise ValueError(op)
        elif op.startswith("v_"):
            self.kind = "valu"
            base = op.replace("_e32","").replace("_e64","").replace("_dpp","").replace("_sdwa","")
            self.isdpp = ("_dpp" in op) or ("row_" in mods) or ("quad_perm" in mods)
            self.sdwa = "_sdwa" in op
            if base.startswith("v_cmp"):
                self.dst = R[0]; self.src = allsrc(R[1:])
                if base.startswith("v_cmpx"): self.dst = self.dst + regs_of("exec")
            elif base in ("v_readfirstlane_b32","v_readlane_b32"):
                self.dst = R[0]; self.src = allsrc(R[1:])
            elif base.startswith("v_permlane") and "swap" in base:
                self.dst = R[0] + R[1]; self.src = R[0] + R[1]
            elif base in ("v_fmac_f32","v_dot2c_f32_bf16","v_pk_fmac_f16","v_mac_f32","v_writelane_b32"):
                self.dst = R[0]; self.src = allsrc(R)
            elif base in ("v_add_co_u32","v_sub_co_u32","v_subrev_co_u32"):
                self.dst = R[0] + R[1]; self.src = allsrc(R[2:])
            elif base in ("v_addc_co_u32","v_subb_co_u32"):
                self.dst = R[0] + R[1]; self.src = allsrc(R[2:])
            elif base == "v_cndmask_b32":
                self.dst = R[0]; self.src = allsrc(R[1:])
                if len(ops) == 3: self.src += regs_of("vcc")
            else:
                self.dst = R[0]; self.src = allsrc(R[1:])
                if self.isdpp: self.src += R[0]
        elif op.startswith("ds_"):
            self.kind = "ds"
            if op.startswith("ds_read") or op.startswith("ds_bpermute") or op.startswith("ds_swizzle") or op.startswith("ds_permute"):
                self.dst = R[0]; self.src = allsrc(R[1:])
            else:
                self.src = allsrc(R)
        elif op.startswith("buffer_") or op.startswith("global_"):
            self.kind = "vmem"
            if op in ("buffer_inv","buffer_wbl2"):
                pass
            elif " lds" in (" " + mods) or "load_lds" in op:
                self.src = allsrc(R) + regs_of("m0"); self.kind = "vmem_lds"
            elif "_load" in op:
                self.dst = R[0]; self.src = allsrc(R[1:])
            elif "_store" in op:
                self.src = allsrc(R)
            elif "_atomic" in op:
                self.src = allsrc(R)
                if "sc0" in mods: self.dst = R[0]
        elif op.startswith("s_"):
            self.kind = "salu"
            if op == "s_nop":
                self.states = int(ops[0], 0) + 1; self.kind = "nop"
            elif op in ("s_waitcnt","s_barrier","s_endpgm","s_sleep","s_setprio"):
                self.kind = "sctl"
            elif op.startswith("s_cbranch") or op == "s_branch" or op.startswith("s_setpc") or op.startswith("s_swappc"):
                self.kind = "branch"
            elif op.startswith("s_cmp") or op.startswith("s_bitcmp"):
                self.src = allsrc(R)
            elif op.startswith("s_load") or op.startswith("s_memtime") or op.startswith("s_memrealtime") or op.startswith("s_buffer_load"):
                self.kind = "smem"; self.dst = R[0]; self.src = allsrc(R[1:])
            elif "saveexec" in op:
                self.dst = R[0] + regs_of("exec"); self.src = allsrc(R[1:]) + regs_of("exec")
            else:
                self.dst = R[0]; self.src = allsrc(R[1:])
        else:
            raise ValueError("unknown op " + text)

def need(prev, cur):
    n = 0
    pd = set(prev.dst)
    if prev.kind == "valu":
        pv = {r for r in pd if r[0] in "va"}
        ps = {r for r in pd if r[0] == "s"}
        if cur.kind == "mfma" and pv & set(cur.src): n = max(n, 2)
        if cur.kind == "valu":
            if cur.op.startswith("v_permlane") and pv & set(cur.src): n = max(n, 2)
            if cur.isdpp and pv & set(cur.src): n = max(n, 2)
            if cur.op.startswith(("v_readlane","v_readfirstlane")) and pv & set(cur.src): n = max(n, 1)
            pb = prev.op.replace("_e32","").replace("_e64","")
            cb = cur.op.replace("_e32","").replace("_e64","")
            if pb in TRANS and cb not in TRANS and pv & set(cur.src): n = max(n, 1)
            if pb in TRANS and cb in TRANS and pv & set(cur.src): n = max(n, 1)
            if prev.sdwa and pv & (set(cur.src) | set(cur.dst)): n = max(n, 1)
            if ps & set(cur.src):
                n = max(n, 4 if cur.op.startswith(("v_readlane","v_writelane")) else 2)
            if pb.startswith("v_dot2") and pv & (set(cur.src) | set(cur.dst)) and not cb == pb: n = max(n, 3)
        if cur.kind in ("vmem","vmem_lds") and ps & set(cur.src): n = max(n, 5)
        if cur.kind == "mfma" and ("s","exec_lo") in pd: n = max(n, 4)
    if prev.kind == "mfma":
        P = prev.passes
        t_rd = {2:5, 4:8, 8:12}[P]
        if cur.kind == "mfma":
            if pd & set(cur.srcC):
                if cur.srcC == prev.dst and cur.passes == P: n = max(n, 2 if P == 2 else 0)
                else: n = max(n, {2:4, 4:6, 8:10}[P])
            if pd & (set(cur.srcA) | set(cur.srcB)): n = max(n, t_rd)
            if pd & set(cur.dst) and not (cur.srcC == prev.dst and cur.dst == prev.dst):
                n = max(n, t_rd)
        elif cur.kind in ("valu","ds","vmem","vmem_lds"):
            if pd & (set(cur.src) | set(cur.dst)): n = max(n, t_rd)
        if cur.kind == "valu" and set(prev.srcC) & set(cur.dst): n = max(n, {2:1, 4:3, 8:7}[P])
    if prev.kind == "salu" and ("s","m0") in pd and cur.kind == "vmem_lds": n = max(n, 1)
    if prev.kind == "vmem" and "_store" in (prev.op or "") and ("x4" in prev.op or "x3" in prev.op):
        data = set(regs_of(prev.ops[0]))
        if cur.kind == "valu" and data & set(cur.dst): n = max(n, 2)
        elif cur.kind in ("ds","vmem","mfma") and data & set(cur.dst): n = max(n, 1)
    return n

def fix_hazards(lines, report=None):
    out = []; window = []
    nins = 0
    for text in lines:
        ins = Ins(text)
        if ins.kind in ("none","label"):
            out.append(text); continue
        req = 0; dist = 0
        for p in reversed(window):
            r = need(p, ins)
            if r - dist > req: req = r - dist
            dist += p.states
            if dist >= 20: break
        if req > 0:
            k = req
            while k > 0:
                c = min(k, 16)
                nop = f"s_nop {c-1}"
                out.append(nop); window.append(Ins(nop)); k -= c
            nins += req
        out.append(text); window.append(ins)
        if len(window) > 40: window = window[-24:]
    if report is not None: report["nop_states"] = nins
    return out

class K:
    def __init__(self): self.lines = []; self.uid = 0
    def __call__(self, s):
        for l in s.split("\n"):
            l = l.strip()
            if l: self.lines.append(l)
    def label(self, name): self.lines.append(name + ":")
    def newlabel(self, p="L"):
        self.uid += 1; return f"{p}_{self.uid}"
    def c(self, s): self.lines.append("; " + s)
```

```python
import sys, math, json
sys.path.insert(0, "work")
from asmlib import *

BASE = "interleave_layers__sliding_local_dilated__linear_kernel_hedgehog__prompt"
NAME = BASE + "_kernel"

ROWB = 1152
WROW = 3456
XBYTES = 2048 * ROWB
WBYTES = 576 * WROW
OBYTES = 576 * ROWB
WS_O = 0
WS_X1 = 0x240000
WS_X2 = 0x480000
WS_S1 = 0x6C0000
WS_S2 = 0x6E0000
WS_KVP = 0x700000
WS_FL = 0xA00000
FL_LOC = WS_FL + 0x0000
FL_GLB = WS_FL + 0x1000
FL_S0 = WS_FL + 0x2000
FL_EPOCH = WS_FL + 0x4000
WS_DBG = 0x1000000
WS_SIZE = 0x10000000
OOB = 0x40000000

WSTR = 240
LWO = 55296; OSTR = 144
KVS = 138240; SA = 168
LCS = 162432
SB = 248
KT_DM = KVS
KT_DT = KVS + 2048
KT_FDM = KVS + 3072
KT_FDT = KVS + 3328
LDS_BYTES = 163840

sWA, sWB, sOA, sOB, sXS, sWS, sOUT, sXD, sX1 = 4, 8, 12, 16, 20, 24, 28, 32, 36
sPHI = 40
sW, sR, sJ, sIT, sT, sHALF, sCG, sTMO = 44, 45, 46, 47, 48, 49, 50, 51
sFLOC, sFGLB = 52, 53
sPOLLX = 54
sT0, sT1, sT2, sT3, sT4, sT5, sT6, sT7 = 56, 57, 58, 59, 60, 61, 62, 63
sEX60 = 64
sEXH = 66
sGM = 68
sONES = 76
sK18 = 77
sL2E = 78
sCSC = 80
sSS = 82
sKVP = 83
sWOS = 84
sWOS2 = 85
sODD = 86
sG3 = 88
sSD = 90
sEPS6 = 91
sXCC = 92
sTS = 94
sTSB = 96

ACC = 0
WF = 56
TMP = 112
vXoff = 176
vWtr = [177, 178]; vWtrT = [179, 180]
vOtr = [181, 182]
vWdma = 183; vOdma = [184, 185, 186]
vOoff = 187
vOst, vOstT, vXst, vXst4, vSst, vSld = 188, 189, 190, 191, 192, 193
vHrow = 194
vFlX, vFlG = 195, 196
vLane, vM, vG = 197, 198, 199
XRES = 200
MPREV0, MPREV, MCUR = 210, 214, 218
vG0m = 222
vKVw, vKVh, vKr, vKrT, vVtr, vVttr = 223, 224, 225, 226, 227, 228
vPKw, vPKt = 229, 230
ATQ = 232
vPrd = 248
vPrdT = 249
vPrdB = 250
vKV1, vKV2, vKV3 = 251, 252, 253
vKTw = 254
vZero = 255
vExA = 231
XF = 0; HF = 144
AQM = 216
AKM = 224
AONES = 232
ATK = 236

EA, EB = TMP + 0, TMP + 4
NM = [TMP + 8, TMP + 10, TMP + 12]
RS = [TMP + 14, TMP + 16, TMP + 18]
SL = [TMP + 20, TMP + 24, TMP + 28]

def acc(t, m): return ACC + (2 * t + m) * 4
TILE_OFF = [0, 40, 80, 120, 160, 200]
LOG2E = 1.4426950408889634
def f2u(x):
    import struct
    return struct.unpack("<I", struct.pack("<f", x))[0]

class Gen(K):
    def __init__(self, stop=None, dumps=(), ts=False):
        super().__init__()
        self.dbg = {}
        self.stop = stop
        self.dumps = set(dumps)
        self.dbgslot = 0
        self.ts = ts
        self.tsn = 0
        self.stopped = False

    def mov(self, d, x): self(f"v_mov_b32 v{d}, {x}")
    def smov(self, d, x): self(f"s_mov_b32 s{d}, {x}")
    def srd(self, d, lo, hi, size):
        self(f"s_mov_b32 s{d}, {lo}\ns_mov_b32 s{d+1}, {hi}\ns_mov_b32 s{d+2}, {size}\ns_mov_b32 s{d+3}, 0x20000")
    def srd_off(self, d, lo, hi, off, size):
        self(f"s_add_u32 s{d}, {lo}, {off}\ns_addc_u32 s{d+1}, {hi}, 0\ns_mov_b32 s{d+2}, {size}\ns_mov_b32 s{d+3}, 0x20000")
    def waitv(self, n=0): self(f"s_waitcnt vmcnt({n})")
    def waitl(self, n=0): self(f"s_waitcnt lgkmcnt({n})")
    def barrier(self): self("s_barrier")

    def dump(self, name, regs, kind="v", cond_it=None):
        if name not in self.dumps: return
        self.c(f"dump {name}")
        L = None
        if cond_it is not None:
            L = self.newlabel("Ldmp")
            self(f"s_cmp_eq_u32 s{sIT}, {cond_it}\ns_cbranch_scc0 {L}")
        self("s_waitcnt vmcnt(0) lgkmcnt(0)")
        self("s_nop 7\ns_nop 7")
        t = 175
        self(f"s_lshl_b32 s{sT0}, s2, 2\ns_add_u32 s{sT0}, s{sT0}, s{sW}\ns_lshl_b32 s{sT0}, s{sT0}, 8")
        self(f"v_lshlrev_b32 v{t}, 2, v{vLane}\nv_add_u32 v{t}, s{sT0}, v{t}")
        for r in regs:
            off = WS_DBG + self.dbgslot * 0x40000
            self(f"s_mov_b32 s{sT1}, {off}")
            if kind == "a":
                self(f"v_accvgpr_read_b32 v174, a{r}\ns_nop 1")
                self(f"buffer_store_dword v174, v{t}, s[{sWS}:{sWS+3}], s{sT1} offen")
                self("s_waitcnt vmcnt(0)")
            else:
                self(f"buffer_store_dword v{r}, v{t}, s[{sWS}:{sWS+3}], s{sT1} offen")
            self.dbg.setdefault(name, []).append(self.dbgslot)
            self.dbgslot += 1
        self("s_waitcnt vmcnt(0)")
        self("s_nop 7")
        if L: self.label(L)

    def stamp(self, name):
        if not self.ts: return
        n = self.tsn; self.tsn += 1
        self.dbg.setdefault("_ts", []).append(name)
        self(f"s_memtime s[{sTS}:{sTS+1}]")
        self("s_waitcnt lgkmcnt(0)")
        self(f"s_lshl_b32 s{sTS+1}, s{sIT}, 5")
        self(f"s_add_u32 s{sTS+1}, s{sTS+1}, {n}")
        self(f"s_mov_b32 m0, s{sTS+1}")
        self(f"v_writelane_b32 v{vExA}, s{sTS}, m0")

    def checkpoint(self, name, cond_it=None):
        if self.stop == name:
            if cond_it is not None:
                L = self.newlabel("Lck")
                self(f"s_cmp_eq_u32 s{sIT}, {cond_it}\ns_cbranch_scc0 {L}")
                self("s_waitcnt vmcnt(0) lgkmcnt(0)")
                self("s_branch L_END")
                self.label(L)
            else:
                self("s_waitcnt vmcnt(0) lgkmcnt(0)")
                self("s_branch L_END")
            return True
        return False

    def bfly4(self, op, a_, b_, c_, d_):
        self(f"v_permlane16_swap_b32 v{a_}, v{b_}")
        self(f"v_permlane16_swap_b32 v{c_}, v{d_}")
        self(f"{op} v{a_}, v{a_}, v{b_}")
        self(f"{op} v{c_}, v{c_}, v{d_}")
        self(f"v_permlane32_swap_b32 v{a_}, v{c_}")
        self(f"{op} v{a_}, v{a_}, v{c_}")
    def bcast4(self, R, oA, oB, oC, oD):
        self(f"v_mov_b32 v{oA}, v{R}\nv_mov_b32 v{oB}, v{R}")
        self(f"v_permlane16_swap_b32 v{oA}, v{oB}")
        self(f"v_mov_b32 v{oC}, v{oA}\nv_mov_b32 v{oD}, v{oB}")
        self(f"v_permlane32_swap_b32 v{oA}, v{oC}")
        self(f"v_permlane32_swap_b32 v{oB}, v{oD}")
    def bfly2_half(self, op, a_, b_, t_):
        self(f"v_permlane16_swap_b32 v{a_}, v{b_}")
        self(f"{op} v{a_}, v{a_}, v{b_}")
        self(f"v_mov_b32 v{t_}, v{a_}")
        self(f"v_permlane32_swap_b32 v{a_}, v{t_}")
        self(f"{op} v{a_}, v{a_}, v{t_}")
    def bfly2(self, op, a_, b_, t_):
        self.bfly2_half(op, a_, b_, t_)
        self(f"v_mov_b32 v{b_}, v{a_}")
        self(f"v_permlane16_swap_b32 v{a_}, v{b_}")

    def flag_store(self, addr_sreg, p):
        t = TMP + 60
        self(f"s_lshl_b32 s{sT2}, s{sIT}, 3")
        self(f"s_add_u32 s{sT2}, s{sT2}, s{sT}")
        self(f"s_add_u32 s{sT2}, s{sT2}, {p}")
        self(f"s_not_b32 s{sT3}, s{sT2}")
        self(f"v_mov_b32 v{t}, s{sT2}\nv_mov_b32 v{t+1}, s{sT3}")
        self("s_mov_b64 exec, 1")
        self(f"buffer_store_dwordx2 v[{t}:{t+1}], v{vZero}, s[{sWS}:{sWS+3}], s{addr_sreg} offen sc1")
        self("s_mov_b64 exec, -1")

    def poll(self, vaddr, execmask, p):
        t = TMP + 60
        L, Ld = self.newlabel("Lpoll"), self.newlabel("Lgot")
        self(f"s_lshl_b32 s{sT2}, s{sIT}, 3")
        self(f"s_add_u32 s{sT2}, s{sT2}, s{sT}")
        if p >= 0: self(f"s_add_u32 s{sT2}, s{sT2}, {p}")
        else: self(f"s_sub_u32 s{sT2}, s{sT2}, {-p}")
        self(f"s_mov_b64 exec, {execmask}")
        self(f"s_mov_b32 s{sT3}, 0")
        self.label(L)
        self(f"buffer_load_dwordx2 v[{t}:{t+1}], v{vaddr}, s[{sWS}:{sWS+3}], 0 offen sc1")
        self("s_waitcnt vmcnt(0)")
        self(f"v_subrev_u32 v{t+2}, s{sT2}, v{t}")
        self(f"v_xor_b32 v{t+3}, v{t}, v{t+1}")
        self(f"v_cmp_gt_u32 vcc, 32, v{t+2}")
        self(f"v_cmp_eq_u32 s[{sT4}:{sT5}], -1, v{t+3}")
        self("s_nop 1")
        self(f"s_and_b64 vcc, vcc, s[{sT4}:{sT5}]")
        self("s_cmp_eq_u64 vcc, exec")
        self(f"s_cbranch_scc1 {Ld}")
        self(f"s_add_u32 s{sT3}, s{sT3}, 1")
        self(f"s_cmp_lt_u32 s{sT3}, 20000")
        self(f"s_cbranch_scc1 {L}")
        self(f"s_add_u32 s{sTMO}, s{sTMO}, 1")
        self.label(Ld)
        self("s_mov_b64 exec, -1")

    def wave0(self, fn):
        L = self.newlabel("Lw0")
        self(f"s_cmp_eq_u32 s{sW}, 0\ns_cbranch_scc0 {L}")
        fn()
        self.label(L)
        self("s_nop 0")

    def post(self, addr_sreg, p):
        self.waitv(0)
        self.barrier()
        self.wave0(lambda: self.flag_store(addr_sreg, p))

    def wait(self, vaddr, execmask, p):
        self.wave0(lambda: self.poll(vaddr, execmask, p))
        self.barrier()

    def dma_w(self, srd, u0=0, u1=36):
        self.c(f"W DMA u={u0}..{u1-1}")
        self(f"s_mul_i32 s{sWOS2}, s{sW}, 960")
        self(f"s_mov_b64 exec, s[{sEX60}:{sEX60+1}]")
        for u in range(u0, u1):
            self(f"s_add_u32 m0, s{sWOS2}, {3840*u}")
            self(f"s_mov_b32 s{sWOS}, {55296*u}")
            self(f"buffer_load_dwordx4 v{vWdma}, s[{srd}:{srd+3}], s{sWOS} offen lds")
        self("s_mov_b64 exec, -1")

    def dma_o(self, srd):
        self.c("wo DMA")
        self(f"s_lshl_b32 s{sWOS2}, s{sW}, 10")
        for u in range(9):
            for i in range(2):
                self(f"s_add_u32 m0, s{sWOS2}, {LWO + 1024*(9*u + 4*i)}")
                if i == 0: self(f"s_mov_b32 s{sWOS}, {73728*u}")
                self(f"buffer_load_dwordx4 v{vOdma[i]}, s[{srd}:{srd+3}], s{sWOS} offen lds")
        for i in range(2):
            self(f"s_add_u32 s{sT0}, s{sW}, {4*i}")
            self(f"s_mul_i32 s{sWOS}, s{sT0}, 73728")
            self(f"s_mul_i32 s{sT0}, s{sT0}, 9216")
            self(f"s_add_u32 m0, s{sT0}, {LWO + 8192}")
            self(f"buffer_load_dwordx4 v{vOdma[2]}, s[{srd}:{srd+3}], s{sWOS} offen lds")
        L = self.newlabel("Lo8")
        self(f"s_cmp_eq_u32 s{sW}, 0\ns_cbranch_scc0 {L}")
        self(f"s_mov_b32 m0, {LWO + 9216*8 + 8192}")
        self(f"s_mov_b32 s{sWOS}, {73728*8}")
        self(f"buffer_load_dwordx4 v{vOdma[2]}, s[{srd}:{srd+3}], s{sWOS} offen lds")
        self.label(L)

    def load_x(self, srd, pol=""):
        self.c("X frag loads")
        for s_ in range(18):
            for t in range(2):
                so = "0" if t == 0 else f"s{sK18}"
                self(f"buffer_load_dwordx4 a[{XF+72*t+4*s_}:{XF+72*t+4*s_+3}], v{vXoff}, s[{srd}:{srd+3}], {so} offen offset:{64*s_} {pol}")

    def load_halo(self, srd, pol=""):
        self.c("halo frag loads")
        t = TMP + 40
        self(f"v_mul_u32_u24 v{t}, {ROWB}, v{vHrow}")
        self(f"v_lshl_add_u32 v{t}, v{vG}, 4, v{t}")
        self(f"s_mov_b64 exec, s[{sEXH}:{sEXH+1}]")
        for s_ in range(18):
            self(f"buffer_load_dwordx4 a[{HF+4*s_}:{HF+4*s_+3}], v{t}, s[{srd}:{srd+3}], 0 offen offset:{64*s_} {pol}")
        self("s_mov_b64 exec, -1")

    def prologue(self):
        A = self
        A("s_cmp_ge_u32 s2, 256")
        A("s_cbranch_scc1 L_EXIT")
        A("s_load_dwordx4 s[56:59], s[0:1], 0")
        A("s_load_dwordx2 s[60:61], s[0:1], 16")
        A("s_load_dwordx4 s[64:67], s[0:1], 32")
        A("s_load_dwordx4 s[68:71], s[0:1], 48")
        A("s_load_dwordx2 s[72:73], s[0:1], 72")
        A(f"s_and_b32 s{sR}, s2, 7\ns_lshl_b32 s{sR}, s{sR}, 1\ns_lshr_b32 s3, s2, 7\ns_add_u32 s{sR}, s{sR}, s3")
        A(f"s_lshr_b32 s{sJ}, s2, 3\ns_and_b32 s{sJ}, s{sJ}, 15")
        A(f"s_lshr_b32 s{sHALF}, s{sJ}, 3\ns_and_b32 s{sCG}, s{sJ}, 7")
        A(f"v_lshrrev_b32 v1, 6, v0")
        A(f"v_and_b32 v{vLane}, 63, v0")
        A(f"v_readfirstlane_b32 s{sW}, v1")
        A(f"v_and_b32 v{vM}, 15, v{vLane}\nv_lshrrev_b32 v{vG}, 4, v{vLane}")
        A(f"v_mov_b32 v{vZero}, 0")
        A("s_waitcnt lgkmcnt(0)")
        self.srd(sXS, "s56", "s57", XBYTES)
        self.srd(sWA, "s58", "s59", WBYTES)
        self.srd(sOA, "s60", "s61", OBYTES)
        self.srd(sWB, "s64", "s65", WBYTES)
        self.srd(sPHI, "s66", "s67", 20736)
        self.srd(sOB, "s68", "s69", OBYTES)
        self.srd(sOUT, "s70", "s71", XBYTES)
        self.srd(sWS, "s72", "s73", WS_SIZE)
        self.srd_off(sX1, "s72", "s73", WS_X1, XBYTES)
        self.srd_off(sXD, "s72", "s73", WS_X2, XBYTES)
        A(f"s_mov_b32 s{sEX60}, -1\ns_mov_b32 s{sEX60+1}, 0x0fffffff")
        A(f"s_mov_b32 s{sEXH}, 0xfffefffe\ns_mov_b32 s{sEXH+1}, 0xfffefffe")
        for g in range(4):
            lo = 0xffff << (16 * (g & 1)) if g < 2 else 0
            hi = 0xffff << (16 * (g & 1)) if g >= 2 else 0
            A(f"s_mov_b32 s{sGM+2*g}, {hex(lo)}\ns_mov_b32 s{sGM+2*g+1}, {hex(hi)}")
        A(f"s_mov_b32 s{sONES}, 0x3f803f80\ns_mov_b32 s{sK18}, 18432")
        A(f"s_mov_b32 s{sL2E}, {hex(f2u(LOG2E))}\ns_mov_b32 s{sL2E+1}, {hex(f2u(LOG2E))}")
        csc = f2u(18 ** -0.5 * LOG2E)
        A(f"s_mov_b32 s{sCSC}, {hex(csc)}\ns_mov_b32 s{sCSC+1}, {hex(csc)}")
        A(f"s_mov_b32 s{sEPS6}, {hex(f2u(1e-6))}")
        A(f"s_mov_b32 s{sIT}, 0\ns_mov_b32 s{sTMO}, 0")
        A(f"v_lshrrev_b32 v1, 2, v{vM}\nv_and_b32 v2, 3, v{vLane}")
        A(f"s_lshl_b32 s3, s{sR}, 7")
        A(f"v_mul_u32_u24 v3, 69, v{vLane}\nv_lshrrev_b32 v3, 10, v3")
        A(f"v_mul_u32_u24 v4, 15, v3\nv_sub_u32 v4, v{vLane}, v4")
        A(f"v_mul_u32_u24 v5, 52, v4\nv_lshrrev_b32 v5, 8, v5")
        A(f"v_mul_u32_u24 v6, 5, v5\nv_sub_u32 v6, v4, v6")
        A(f"v_and_b32 v7, 1, v3\nv_lshlrev_b32 v7, 2, v7\nv_lshrrev_b32 v3, 1, v3\nv_add_u32 v7, v7, v3")
        A(f"s_and_b32 s{sT0}, s{sW}, 1\ns_lshl_b32 s{sT0}, s{sT0}, 1\ns_lshr_b32 s{sT1}, s{sW}, 1\ns_lshl_b32 s{sT1}, s{sT1}, 3\ns_add_u32 s{sT0}, s{sT0}, s{sT1}")
        A(f"v_add_u32 v7, s{sT0}, v7")
        A(f"s_mov_b32 s{sT2}, {WROW}\nv_mul_lo_u32 v7, v7, s{sT2}")
        A(f"v_mul_u32_u24 v5, {ROWB}, v5\nv_add_u32 v7, v7, v5\nv_lshl_add_u32 v7, v6, 4, v7")
        A(f"s_mul_i32 s{sT1}, s{sJ}, 72")
        A(f"v_add_u32 v{vWdma}, s{sT1}, v7")
        self.dma_w(sWA)
        A(f"s_lshl_b32 s{sT0}, s{sW}, 5\ns_add_u32 s{sT0}, s{sT0}, s3")
        A(f"v_add_u32 v8, s{sT0}, v{vM}")
        A(f"v_mul_u32_u24 v9, {ROWB}, v8")
        A(f"v_lshl_add_u32 v{vXoff}, v{vG}, 4, v9")
        self.load_x(sXS)
        A(f"v_mov_b32 v10, s{sONES}")
        for i in range(72): A(f"v_accvgpr_write_b32 a{HF+i}, v10")
        for i in range(4): A(f"v_accvgpr_write_b32 a{AONES+i}, v10")
        A(f"s_sub_u32 s{sT2}, s3, 16")
        A(f"v_add_u32 v{vHrow}, s{sT2}, v{vM}\nv_max_i32 v{vHrow}, 0, v{vHrow}")
        self.load_halo(sXS)
        A(f"s_mov_b32 s{sT2}, {FL_EPOCH}")
        A(f"buffer_load_dword v11, v{vZero}, s[{sWS}:{sWS+3}], s{sT2} offen sc1")
        A(f"s_mul_i32 s{sT1}, s{sJ}, 72")
        A(f"v_add_u32 v{vOst}, s{sT1}, v9")
        A(f"v_add_u32 v12, 32, v{vOst}")
        A(f"v_mov_b32 v13, {OOB}")
        A(f"v_cndmask_b32 v{vOstT}, v13, v12, s[{sGM}:{sGM+1}]")
        A(f"v_lshl_add_u32 v{vOst}, v{vG}, 3, v{vOst}")
        A(f"v_lshlrev_b32 v12, 6, v8\nv_lshl_add_u32 v{vSld}, v{vG}, 4, v12")
        A(f"s_lshl_b32 s{sT0}, s{sHALF}, 6\ns_add_u32 s{sT0}, s{sT0}, s3\ns_lshl_b32 s{sT1}, s{sW}, 4\ns_add_u32 s{sT0}, s{sT0}, s{sT1}")
        A(f"v_add_u32 v14, s{sT0}, v{vM}")
        A(f"v_mul_u32_u24 v15, {ROWB}, v14")
        A(f"v_lshl_add_u32 v{vOoff}, v{vG}, 4, v15")
        A(f"s_mul_i32 s{sT1}, s{sCG}, 144")
        A(f"v_add_u32 v15, s{sT1}, v15")
        A(f"v_and_b32 v16, 1, v{vG}\nv_lshrrev_b32 v17, 1, v{vG}")
        A(f"v_lshl_add_u32 v{vXst}, v16, 5, v15\nv_lshl_add_u32 v{vXst}, v17, 4, v{vXst}")
        A(f"v_lshl_add_u32 v18, v{vG}, 3, v15\nv_add_u32 v18, 128, v18")
        A(f"v_cmp_gt_u32 vcc, 2, v{vG}")
        A(f"v_cndmask_b32 v{vXst4}, v13, v18, vcc")
        A(f"v_lshlrev_b32 v18, 6, v14\nv_lshl_add_u32 v18, v{vG}, 2, v18\ns_lshl_b32 s{sT1}, s{sCG}, 3\nv_add_u32 v18, s{sT1}, v18")
        A(f"v_cndmask_b32 v{vSst}, v13, v18, vcc")
        A(f"buffer_load_dwordx4 v[{XRES}:{XRES+3}], v{vXst}, s[{sXS}:{sXS+3}], 0 offen")
        A(f"buffer_load_dwordx4 v[{XRES+4}:{XRES+7}], v{vXst}, s[{sXS}:{sXS+3}], 0 offen offset:64")
        A(f"buffer_load_dwordx2 v[{XRES+8}:{XRES+9}], v{vXst4}, s[{sXS}:{sXS+3}], 0 offen")
        PH = 120
        A(f"s_lshl_b32 s{sT0}, s{sJ}, 1\ns_mul_i32 s{sT0}, s{sT0}, 648")
        A(f"v_mul_u32_u24 v19, 144, v{vG}")
        A(f"v_lshl_add_u32 v20, v{vM}, 1, v19")
        A(f"v_and_b32 v21, 1, v{vM}\nv_lshlrev_b32 v21, 1, v21\nv_add_u32 v21, 32, v21")
        A(f"v_add_u32 v22, v19, v21")
        A(f"v_lshlrev_b32 v23, 1, v{vM}")
        for h in range(2):
            for st in range(2):
                vm = 20 if st == 0 else 22
                vt = 23 if st == 0 else 21
                for e in range(6):
                    if e < 4: d0 = e + (2 if h else 0); vv = vm
                    else: d0 = (16 + e - 4) if h == 0 else (e - 4); vv = vt
                    off = h * 648 + d0 * 36
                    A(f"buffer_load_ushort v{PH+(h*2+st)*6+e}, v{vv}, s[{sPHI}:{sPHI+3}], s{sT0} offen offset:{off}")
        A(f"v_lshlrev_b32 v24, 3, v{vG}\nv_lshl_add_u32 v24, v1, 1, v24")
        A(f"v_mul_u32_u24 v25, {WSTR}, v24")
        A(f"v_lshl_add_u32 v{vWtr[0]}, v2, 3, v25\nv_add_u32 v{vWtr[1]}, {9*7680}, v{vWtr[0]}")
        A(f"v_mul_u32_u24 v26, 80, v2\nv_cmp_eq_u32 vcc, 3, v2\nv_cndmask_b32 v26, v26, v{vZero}, vcc")
        A(f"v_add_u32 v26, 32, v26\nv_add_u32 v{vWtrT[0]}, v25, v26\nv_add_u32 v{vWtrT[1]}, {9*7680}, v{vWtrT[0]}")
        A(f"v_mul_u32_u24 v25, {OSTR}, v24\nv_lshl_add_u32 v25, v2, 3, v25")
        A(f"v_add_u32 v{vOtr[0]}, {LWO}, v25\nv_add_u32 v{vOtr[1]}, {LWO + 9*4608}, v25")
        for i in range(3):
            if i < 2:
                A(f"s_add_u32 s{sT0}, s{sW}, {4*i}\ns_lshl_b32 s{sT0}, s{sT0}, 6")
                A(f"v_add_u32 v26, s{sT0}, v{vLane}")
            else:
                A(f"v_add_u32 v26, 512, v{vLane}")
            A(f"v_mul_u32_u24 v27, 7282, v26\nv_lshrrev_b32 v27, 16, v27")
            A(f"v_mul_u32_u24 v28, 9, v27\nv_sub_u32 v28, v26, v28")
            A(f"v_and_b32 v29, 56, v27\nv_and_b32 v30, 1, v27\nv_lshl_add_u32 v29, v30, 2, v29")
            A(f"v_and_b32 v30, 7, v27\nv_lshrrev_b32 v30, 1, v30\nv_add_u32 v29, v29, v30")
            A(f"v_mul_u32_u24 v29, {ROWB}, v29\nv_lshl_add_u32 v29, v28, 4, v29")
            A(f"s_mul_i32 s{sT1}, s{sCG}, 144\nv_add_u32 v{vOdma[i]}, s{sT1}, v29")
        A(f"s_lshl_b32 s{sT0}, s{sW}, 5")
        A(f"v_add_u32 v26, s{sT0}, v{vM}")
        A(f"v_mul_u32_u24 v27, {SA}, v26")
        A(f"v_lshl_add_u32 v28, v{vG}, 3, v27")
        A(f"v_add_u32 v{vKr}, {KVS}, v28\nv_add_u32 v{vKVw}, {KVS + 16*SA}, v28\nv_add_u32 v{vKrT}, {KVS + 136}, v27")
        A(f"v_mul_u32_u24 v27, {SA}, v{vM}\nv_lshl_add_u32 v27, v{vG}, 3, v27\ns_lshl_b32 s{sT1}, s{sW}, 5\ns_add_u32 s{sT1}, s{sT1}, {KVS}\nv_add_u32 v{vKVh}, s{sT1}, v27")
        A(f"v_lshl_add_u32 v27, v{vG}, 2, v1\nv_add_u32 v27, s{sT0}, v27\nv_mul_u32_u24 v27, {SA}, v27")
        A(f"v_add_u32 v{vVttr}, {KVS + 144}, v27\nv_lshl_add_u32 v27, v2, 3, v27\nv_add_u32 v{vVtr}, {KVS + 64}, v27")
        A(f"v_cndmask_b32 v{vG0m}, 0, -1, s[{sGM}:{sGM+1}]")
        A(f"v_lshlrev_b32 v27, 2, v{vG}\nv_sub_u32 v27, v{vM}, v27")
        A(f"v_mov_b32 v28, {hex(f2u(-1e30))}")
        for j in range(4):
            A(f"v_subrev_u32 v29, {j}, v27")
            A(f"v_and_b32 v30, 1, v29")
            A(f"v_cmp_eq_u32 s[{sT4}:{sT5}], 0, v30")
            A(f"v_cmp_le_i32 vcc, 0, v29")
            A(f"s_and_b64 vcc, vcc, s[{sT4}:{sT5}]")
            A(f"v_cndmask_b32 v{MCUR+j}, v28, v{vZero}, vcc")
            A(f"v_cmp_ge_i32 vcc, -2, v29")
            A(f"s_and_b64 vcc, vcc, s[{sT4}:{sT5}]")
            A(f"v_cndmask_b32 v{MPREV+j}, v28, v{vZero}, vcc")
        A(f"s_or_b32 s{sT0}, s{sR}, s{sW}\ns_cmp_eq_u32 s{sT0}, 0\ns_cselect_b64 vcc, -1, 0")
        for j in range(4): A(f"v_cndmask_b32 v{MPREV0+j}, v{MPREV+j}, v28, vcc")
        A(f"s_lshl_b32 s{sT0}, s{sW}, 5")
        A(f"v_add_u32 v26, s{sT0}, v{vM}\nv_mul_u32_u24 v26, {SB}, v26\nv_lshl_add_u32 v{vPKw}, v{vG}, 3, v26")
        A(f"v_lshrrev_b32 v27, 1, v{vG}\nv_lshlrev_b32 v27, 4, v27\nv_add_u32 v27, v27, v{vM}\nv_add_u32 v27, s{sT0}, v27")
        A(f"v_mul_u32_u24 v27, {SB}, v27\nv_and_b32 v28, 1, v{vG}\nv_lshl_add_u32 v27, v28, 3, v27\nv_add_u32 v{vPKt}, 128, v27")
        A(f"v_and_b32 v27, 1, v{vG}\nv_lshlrev_b32 v27, 4, v27\nv_lshl_add_u32 v27, v1, 2, v27\nv_lshrrev_b32 v28, 1, v{vG}\nv_lshl_add_u32 v27, v28, 1, v27")
        A(f"v_mul_u32_u24 v27, {SB}, v27")
        A(f"s_lshr_b32 s{sT0}, s{sW}, 1\ns_and_b32 s{sT1}, s{sW}, 1")
        A(f"s_lshl_b32 s{sT2}, s{sT0}, 6\nv_lshl_add_u32 v28, v2, 3, v27\nv_add_u32 v{vPrd}, s{sT2}, v28")
        A(f"s_lshl_b32 s{sT2}, s{sT0}, 3\ns_add_u32 s{sT2}, s{sT2}, 128\nv_add_u32 v{vPrdT}, s{sT2}, v27")
        A(f"s_lshl_b32 s{sT2}, s{sT0}, 5\ns_add_u32 s{sT2}, s{sT2}, 144\nv_add_u32 v28, s{sT2}, v28")
        A(f"v_cmp_eq_u32 vcc, 0, v2\nv_mov_b32 v29, 232\nv_mov_b32 v30, 224\nv_cndmask_b32 v29, v29, v30, vcc\nv_add_u32 v29, v29, v27")
        A(f"s_cmp_eq_u32 s{sT1}, 0\ns_cselect_b64 vcc, -1, 0\nv_cndmask_b32 v{vPrdB}, v29, v28, vcc")
        A(f"v_lshlrev_b32 v26, 4, v{vLane}")
        A(f"v_mul_u32_u24 v27, 5, v{vG}\nv_add_u32 v27, v27, v{vM}\nv_lshlrev_b32 v27, 4, v27\nv_add_u32 v27, 2304, v27")
        A(f"v_cmp_gt_u32 s[{sT4}:{sT5}], 5, v{vM}")
        A(f"v_cndmask_b32 v27, v13, v27, s[{sT4}:{sT5}]")
        A(f"v_cndmask_b32 v{vKV1}, v27, v26, vcc")
        A(f"s_mul_i32 s{sT2}, s{sT0}, 3072")
        A(f"v_add_u32 v{vKV1}, s{sT2}, v{vKV1}")
        A(f"v_mov_b32 v28, 320\nv_mov_b32 v29, 1024\nv_cndmask_b32 v28, v28, v29, vcc\nv_add_u32 v{vKV2}, v28, v{vKV1}")
        A(f"v_lshlrev_b32 v28, 4, v{vM}\nv_add_u32 v29, 2944, v28\nv_cndmask_b32 v29, v13, v29, s[{sT4}:{sT5}]\nv_add_u32 v28, 2048, v28\nv_cndmask_b32 v28, v29, v28, vcc")
        A(f"v_add_u32 v28, s{sT2}, v28\nv_cndmask_b32 v{vKV3}, v13, v28, s[{sGM}:{sGM+1}]")
        A(f"s_lshl_b32 s{sT0}, s{sR}, 7\ns_add_u32 s{sT0}, s{sT0}, {FL_LOC}\ns_lshl_b32 s{sT1}, s{sJ}, 3\ns_add_u32 s{sFLOC}, s{sT0}, s{sT1}")
        A(f"v_lshlrev_b32 v26, 3, v{vLane}\nv_add_u32 v{vFlX}, s{sT0}, v26")
        A(f"v_subrev_u32 v27, {128 + 64}, v{vFlX}\nv_cmp_lt_u32 vcc, 15, v{vLane}\nv_cndmask_b32 v{vFlX}, v{vFlX}, v27, vcc")
        A(f"s_lshl_b32 s{sT0}, s{sJ}, 7\ns_add_u32 s{sT0}, s{sT0}, {FL_GLB}\ns_lshl_b32 s{sT1}, s{sR}, 3\ns_add_u32 s{sFGLB}, s{sT0}, s{sT1}")
        A(f"v_add_u32 v{vFlG}, s{sT0}, v26")
        A(f"s_mov_b32 s{sT0}, 0xffffff\ns_cmp_eq_u32 s{sR}, 0\ns_cselect_b32 s{sPOLLX}, 0xffff, s{sT0}\ns_mov_b32 s{sPOLLX+1}, 0")
        A(f"s_mul_i32 s{sKVP}, s{sJ}, {16*6144}\ns_add_u32 s{sKVP}, s{sKVP}, {WS_KVP}")
        A(f"s_mov_b32 s{sSS}, {WS_S2}")
        self.waitv(0)
        A(f"v_readfirstlane_b32 s{sT}, v11")
        A(f"s_add_u32 s{sT}, s{sT}, 1")
        CM = 150
        for h in range(2):
            for st in range(2):
                b = PH + (h*2+st)*6; c = CM + (h*2+st)*3
                for e in range(3):
                    A(f"v_lshl_or_b32 v{c+e}, v{b+2*e+1}, 16, v{b+2*e}")
        for h in range(2):
            cm = CM + (h*2+0)*3
            for (dst, grp) in ((AQM, 0), (AKM, 1)):
                A(f"v_cndmask_b32 v26, 0, v{cm+2}, s[{sGM+2*grp}:{sGM+2*grp+1}]")
                if h == 0: regs = [f"v{cm}", f"v{cm+1}", "v26", f"v{vZero}"]
                else: regs = [f"v{vZero}", "v26", f"v{cm}", f"v{cm+1}"]
                for i in range(4): A(f"v_accvgpr_write_b32 a{dst+4*h+i}, {regs[i]}")
        for c in range(4):
            h = c & 1
            cm = CM + (h*2+1)*3
            A(f"v_lshrrev_b32 v27, 1, v{vM}\nv_cmp_eq_u32 vcc, {2*c}, v27")
            A(f"v_cndmask_b32 v28, 0, v{cm}, vcc\nv_cndmask_b32 v29, 0, v{cm+1}, vcc\nv_cndmask_b32 v30, 0, v{cm+2}, vcc")
            for (isq, grp) in ((1, 0), (0, 1)):
                A(f"v_cndmask_b32 v26, 0, v30, s[{sGM+2*grp}:{sGM+2*grp+1}]")
                if h == 0: regs = ["v28", "v29", "v26", f"v{vZero}"]
                else: regs = [f"v{vZero}", "v26", "v28", "v29"]
                for i in range(4):
                    if isq: A(f"v_mov_b32 v{ATQ+4*c+i}, {regs[i]}")
                    else: A(f"v_accvgpr_write_b32 a{ATK+4*c+i}, {regs[i]}")
        self.c("layer-0 stats")
        S1 = [TMP + 32, TMP + 36, TMP + 40]; S2 = [TMP + 44, TMP + 48, TMP + 52]
        for s_ in range(18):
            for t in range(3):
                x = (XF + 72*t + 4*s_) if t < 2 else (HF + 4*s_)
                c1 = "0" if s_ == 0 else f"v[{S1[t]}:{S1[t]+3}]"; c2 = "0" if s_ == 0 else f"v[{S2[t]}:{S2[t]+3}]"
                A(f"v_mfma_f32_16x16x32_bf16 v[{S1[t]}:{S1[t]+3}], a[{AONES}:{AONES+3}], a[{x}:{x+3}], {c1}")
                A(f"v_mfma_f32_16x16x32_bf16 v[{S2[t]}:{S2[t]+3}], a[{x}:{x+3}], a[{x}:{x+3}], {c2}")
        A(f"v_and_b32 v26, 3, v{vM}")
        A(f"v_cmp_eq_u32 s[{sT4}:{sT5}], v1, v{vG}")
        for t in range(3):
            d = S2[t]
            for j in range(1, 4):
                A(f"v_cmp_eq_u32 vcc, {j}, v26\nv_cndmask_b32 v{d}, v{d}, v{d+j}, vcc")
            A(f"v_cndmask_b32 v{d}, 0, v{d}, s[{sT4}:{sT5}]")
            A(f"v_mov_b32 v{d+1}, v{d}\nv_permlane16_swap_b32 v{d}, v{d+1}\nv_add_f32 v{d}, v{d}, v{d+1}")
            A(f"v_mov_b32 v{d+1}, v{d}\nv_permlane32_swap_b32 v{d}, v{d+1}\nv_add_f32 v{d}, v{d}, v{d+1}")
            self.ln_params(S1[t], d, t)
        self.barrier()

    def ln_params(self, sx, sxx, t):
        A = self
        inv = hex(f2u(1.0 / 576))
        A(f"v_mul_f32 v{NM[t]}, {hex(f2u(-1.0/576))}, v{sx}")
        A(f"v_mul_f32 v{sxx}, {inv}, v{sxx}")
        A(f"v_fma_f32 v{sxx}, -v{NM[t]}, v{NM[t]}, v{sxx}")
        A(f"v_max_f32 v{sxx}, 0, v{sxx}")
        A(f"v_add_f32 v{sxx}, {hex(f2u(1e-5))}, v{sxx}")
        A(f"v_rsq_f32 v{RS[t]}, v{sxx}")

    def stats_from_loads(self, n):
        A = self
        for t in range(n):
            b = SL[t]
            A(f"v_add_f32 v{b}, v{b}, v{b+2}\nv_add_f32 v{b+1}, v{b+1}, v{b+3}")
            self.bfly2("v_add_f32", b, b+1, b+2)
            self.ln_params(b, b+1, t)

    def gemm1(self):
        A = self
        self.c("GEMM1 main loop")
        def rd(s_, t, h):
            buf = WF + 28*(s_ & 1) + 4*t + 2*h
            base = (vWtr if t < 6 else vWtrT)[s_ // 9]
            off = (s_ % 9) * 7680 + h * 240 + (TILE_OFF[t] if t < 6 else 0)
            A(f"ds_read_b64_tr_b16 v[{buf}:{buf+1}], v{base} offset:{off}")
        for t in range(7):
            rd(0, t, 0); rd(0, t, 1)
        for s_ in range(18):
            for t in range(7):
                if t % 2 == 0:
                    if s_ < 17: n = 10 if t < 6 else 12
                    else: n = max(0, 10 - 2*t)
                    self.waitl(n)
                buf = WF + 28*(s_ & 1) + 4*t
                for m in range(2):
                    x = XF + m*72 + s_*4
                    c = acc(t, m)
                    cc = "0" if s_ == 0 else f"v[{c}:{c+3}]"
                    A(f"v_mfma_f32_16x16x32_bf16 v[{c}:{c+3}], v[{buf}:{buf+3}], a[{x}:{x+3}], {cc}")
                    if s_ < 17: rd(s_+1, t, m)
        self.c("extra pass")
        tA, tB = TMP + 32, TMP + 34
        A(f"s_mul_i32 s{sT0}, s{sW}, 40\ns_add_u32 s{sT1}, s{sT0}, 80")
        for i in range(2):
            A(f"v_add_u32 v{tA+i}, s{sT1}, v{vWtr[i]}")
            A(f"v_add_u32 v{tB+i}, s{sT0}, v{vWtr[i]}")
        A(f"s_cmp_ge_u32 s{sW}, 2\ns_cselect_b64 vcc, -1, 0")
        for i in range(2):
            A(f"v_cndmask_b32 v{tB+i}, v{tB+i}, v{vWtrT[i]}, vcc")
        NB = 3
        def rde(s_):
            b = WF + 8*(s_ % NB)
            for (ad, o) in ((tA, 0), (tB, 4)):
                for h in range(2):
                    A(f"ds_read_b64_tr_b16 v[{b+o+2*h}:{b+o+2*h+1}], v{ad + s_//9} offset:{(s_%9)*7680 + h*240}")
        rde(0); rde(1)
        for s_ in range(18):
            if s_ + 2 < 18: rde(s_+2); self.waitl(8)
            elif s_ + 1 < 18: self.waitl(4)
            else: self.waitl(0)
            b = WF + 8*(s_ % NB)
            x = HF + 4*s_
            ca = "0" if s_ == 0 else f"v[{EA}:{EA+3}]"; cb = "0" if s_ == 0 else f"v[{EB}:{EB+3}]"
            A(f"v_mfma_f32_16x16x32_bf16 v[{EA}:{EA+3}], v[{b}:{b+3}], a[{x}:{x+3}], {ca}")
            A(f"v_mfma_f32_16x16x32_bf16 v[{EB}:{EB+3}], v[{b+4}:{b+7}], a[{x}:{x+3}], {cb}")
        t = TMP + 36
        A(f"s_add_u32 s{sT0}, s{sW}, 2\ns_lshl_b32 s{sT0}, s{sT0}, 6\ns_add_u32 s{sT0}, s{sT0}, {LCS}")
        A(f"s_add_u32 s{sT1}, s{sW}, 4\ns_cmp_ge_u32 s{sW}, 2\ns_cselect_b32 s{sT1}, s{sT1}, s{sW}\ns_lshl_b32 s{sT1}, s{sT1}, 6\ns_add_u32 s{sT1}, s{sT1}, {LCS}")
        A(f"v_lshlrev_b32 v{t}, 4, v{vG}\nv_add_u32 v{t+1}, s{sT1}, v{t}\nv_add_u32 v{t}, s{sT0}, v{t}")
        A(f"s_not_b64 exec, s[{sEXH}:{sEXH+1}]")
        A(f"ds_write_b128 v{t}, v[{EA}:{EA+3}]")
        A(f"ds_write_b128 v{t+1}, v[{EB}:{EB+3}]")
        A("s_mov_b64 exec, -1")

    def pkfma(self, d, a_, b_pair, c_, nb=False):
        self(f"v_pk_fma_f32 v[{d}:{d+1}], v[{a_}:{a_+1}], v[{b_pair}:{b_pair+1}], v[{c_}:{c_+1}] op_sel_hi:[1,0,1]")
    def pkmul(self, d, a_, b_pair):
        self(f"v_pk_mul_f32 v[{d}:{d+1}], v[{a_}:{a_+1}], v[{b_pair}:{b_pair+1}] op_sel_hi:[1,0]")

    def ln_halo(self):
        A = self
        t = TMP + 40
        for (E, off) in ((EA, 0), (EB, 4)):
            for j in range(4):
                A(f"v_mov_b32_dpp v{t+off+j}, v{E+j} row_newbcast:0 row_mask:0xf bank_mask:0xf")
            for j in range(0, 4, 2):
                self.pkfma(E+j, t+off+j, NM[2], E+j)
                self.pkmul(E+j, E+j, RS[2])
            A(f"v_cvt_pk_bf16_f32 v{t+off}, v{E}, v{E+1}\nv_cvt_pk_bf16_f32 v{t+off+1}, v{E+2}, v{E+3}")
        A(f"ds_write_b64 v{vKVh}, v[{t}:{t+1}]")
        L = self.newlabel("Lht")
        A(f"s_cmp_eq_u32 s{sW}, 2\ns_cbranch_scc0 {L}")
        A(f"ds_write_b64 v{vKVh}, v[{t+4}:{t+5}] offset:64")
        self.label(L)

    def ln_apply(self):
        A = self
        t = TMP + 36
        A(f"v_lshlrev_b32 v{t}, 4, v{vG}\nv_add_u32 v{t}, {LCS}, v{t}")
        for tl in range(7):
            A(f"ds_read_b128 v[{WF+4*tl}:{WF+4*tl+3}], v{t} offset:{64*tl}")
        for tl in range(7):
            self.waitl(6 - tl)
            for m in range(2):
                c = acc(tl, m)
                for j in (0, 2):
                    self.pkfma(c+j, WF+4*tl+j, NM[m], c+j)
                    self.pkmul(c+j, c+j, RS[m])

    def cvtpk(self, d, a_, b_): self(f"v_cvt_pk_bf16_f32 v{d}, v{a_}, v{b_}")

    def epi_A(self):
        A = self
        self.c("A epilogue")
        P = WF + 28
        QF = TMP + 36
        for m in range(2):
            b = P + 10*m
            for i, tl in enumerate((2, 3, 4, 5, 6)):
                c = acc(tl, m)
                self.cvtpk(b+2*i, c, c+1); self.cvtpk(b+2*i+1, c+2, c+3)
            for i in range(5):
                A(f"ds_write_b64 v{vKVw}, v[{b+2*i}:{b+2*i+1}] offset:{32*i + 2688*m}")
            q = QF + 8*m
            c0, c1 = acc(0, m), acc(1, m)
            self.cvtpk(q, c0, c0+1); self.cvtpk(q+1, c0+2, c0+3)
            self.cvtpk(q+6, c1, c1+1); self.cvtpk(q+7, c1+2, c1+3)
            A(f"v_and_b32 v{q+2}, v{vG0m}, v{b+8}\nv_and_b32 v{q+5}, v{vG0m}, v{b+9}")
            A(f"v_mov_b32 v{q+3}, 0\nv_mov_b32 v{q+4}, 0")
        self.waitl(0)
        self.barrier()
        KF = ACC
        for kt in range(3):
            b = KF + 6*kt
            A(f"ds_read_b64 v[{b}:{b+1}], v{vKr} offset:{2688*kt}")
            A(f"ds_read_b64 v[{b+2}:{b+3}], v{vKrT} offset:{2688*kt}")
            A(f"ds_read_b64 v[{b+4}:{b+5}], v{vKr} offset:{2688*kt + 32}")
        VF = ACC + 20
        VT = ACC + 32
        for h in range(2):
            for kt in range(3):
                b = VF + 6*h + 2*kt
                A(f"ds_read_b64_tr_b16 v[{b}:{b+1}], v{vVtr} offset:{2688*kt + 32*h}")
        for kt in range(3):
            A(f"ds_read_b64_tr_b16 v[{VT+2*kt}:{VT+2*kt+1}], v{vVttr} offset:{2688*kt}")
        S = WF
        self.waitl(9)
        for t in range(2):
            for h in range(2):
                c = 2*t + h
                q = QF + 8*t + 4*h
                kp = KF + 6*t + 2*h; kc = KF + 6*(t+1) + 2*h
                mp = MPREV0 if t == 0 else MPREV
                A(f"v_mfma_f32_16x16x32_bf16 v[{S+8*c}:{S+8*c+3}], v[{kp}:{kp+3}], v[{q}:{q+3}], v[{mp}:{mp+3}]")
                A(f"v_mfma_f32_16x16x32_bf16 v[{S+8*c+4}:{S+8*c+7}], v[{kc}:{kc+3}], v[{q}:{q+3}], v[{MCUR}:{MCUR+3}]")
        self.dump("A_S", [S+i for i in range(32)], cond_it=0)
        MX = WF + 32
        for c in range(4):
            s_ = S + 8*c
            A(f"v_max3_f32 v{MX+c}, v{s_}, v{s_+1}, v{s_+2}")
            A(f"v_max3_f32 v{MX+c}, v{MX+c}, v{s_+3}, v{s_+4}")
            A(f"v_max3_f32 v{MX+c}, v{MX+c}, v{s_+5}, v{s_+6}")
            A(f"v_max_f32 v{MX+c}, v{MX+c}, v{s_+7}")
        self.bfly4("v_max_f32", MX, MX+1, MX+2, MX+3)
        A(f"v_mul_f32 v{MX}, s{sCSC}, v{MX}")
        A(f"v_sub_f32 v{MX}, 0, v{MX}")
        MB = WF + 40
        self.bcast4(MX, MB, MB+2, MB+4, MB+6)
        for c in range(4):
            s_ = S + 8*c
            for j in range(0, 8, 2):
                A(f"v_pk_fma_f32 v[{s_+j}:{s_+j+1}], v[{s_+j}:{s_+j+1}], s[{sCSC}:{sCSC+1}], v[{MB+2*c}:{MB+2*c+1}] op_sel_hi:[1,1,0]")
            for j in range(8): A(f"v_exp_f32 v{s_+j}, v{s_+j}")
        PF = ACC + 40
        for c in range(4):
            s_ = S + 8*c
            for i in range(4): self.cvtpk(PF+4*c+i, s_+2*i, s_+2*i+1)
        self.waitl(0)
        O = WF
        for c in range(4):
            t, h = c >> 1, c & 1
            p = PF + 4*c
            vf = VF + 6*h + 2*t
            A(f"v_mfma_f32_16x16x32_bf16 v[{O+32+4*c}:{O+32+4*c+3}], a[{AONES}:{AONES+3}], v[{p}:{p+3}], 0")
            A(f"v_mfma_f32_16x16x32_bf16 v[{O+4*c}:{O+4*c+3}], v[{vf}:{vf+3}], v[{p}:{p+3}], 0")
            A(f"v_mfma_f32_16x16x32_bf16 v[{O+16+4*c}:{O+16+4*c+3}], v[{VT+2*t}:{VT+2*t+3}], v[{p}:{p+3}], 0")
        self.o_finish(O, O+16, lambda c: O+32+4*c, lambda c, h: (O+16+4*c+2*h, O+16+4*c+2*h+1))

    def o_finish(self, O, OT, den, tails, add_eps=False):
        A = self
        R = TMP + 0
        OP = TMP + 8
        for c in range(4):
            if add_eps:
                A(f"v_add_f32 v{R+2*c}, s{sEPS6}, v{den(c)}")
                A(f"v_rcp_f32 v{R+2*c}, v{R+2*c}")
            else:
                A(f"v_rcp_f32 v{R+2*c}, v{den(c)}")
        for c in range(4):
            t, h = c >> 1, c & 1
            o = O + 4*c
            self.pkmul(o, o, R+2*c); self.pkmul(o+2, o+2, R+2*c)
            a_, b_ = tails(c, h)
            self.pkmul(a_, a_, R+2*c)
            self.cvtpk(OP+2*c, o, o+1); self.cvtpk(OP+2*c+1, o+2, o+3)
            self.cvtpk(OP+8+c, a_, b_)
        A(f"s_mov_b32 s{sT0}, {WS_O}\ns_mov_b32 s{sT1}, {WS_O + 18432}")
        for c in range(4):
            t, h = c >> 1, c & 1
            A(f"buffer_store_dwordx2 v[{OP+2*c}:{OP+2*c+1}], v{vOst}, s[{sWS}:{sWS+3}], s{sT0+t} offen offset:{40*h} sc1")
        for t in range(2):
            A(f"buffer_store_dwordx2 v[{OP+8+2*t}:{OP+9+2*t}], v{vOstT}, s[{sWS}:{sWS+3}], s{sT0+t} offen sc1")

    def softmax_pm(self, P, PT, F, FT, tmp):
        A = self
        MX, MN = tmp, tmp + 4
        for c in range(4):
            p = P + 4*c
            A(f"v_max3_f32 v{MX+c}, v{p}, v{p+1}, v{p+2}\nv_max_f32 v{MX+c}, v{MX+c}, v{p+3}")
            A(f"v_min3_f32 v{MN+c}, v{p}, v{p+1}, v{p+2}\nv_min_f32 v{MN+c}, v{MN+c}, v{p+3}")
        self.bfly4("v_max_f32", MX, MX+1, MX+2, MX+3)
        self.bfly4("v_min_f32", MN, MN+1, MN+2, MN+3)
        A(f"v_max3_f32 v{MX}, v{MX}, v{PT}, v{PT+1}\nv_min3_f32 v{MN}, v{MN}, v{PT}, v{PT+1}")
        A(f"v_mul_f32 v{MX}, s{sL2E}, v{MX}\nv_mul_f32 v{MN}, s{sL2E}, v{MN}")
        A(f"v_sub_f32 v{MX}, 0, v{MX}")
        BP, BN = tmp + 8, tmp + 16
        self.bcast4(MX, BP, BP+2, BP+4, BP+6)
        self.bcast4(MN, BN, BN+2, BN+4, BN+6)
        EM = tmp + 24
        for c in range(4):
            p = P + 4*c; em = EM + 4*c
            for j in (0, 2):
                A(f"v_pk_fma_f32 v[{em+j}:{em+j+1}], v[{p+j}:{p+j+1}], s[{sL2E}:{sL2E+1}], v[{BN+2*c}:{BN+2*c+1}] op_sel_hi:[1,1,0] neg_lo:[1,0,0] neg_hi:[1,0,0]")
                A(f"v_pk_fma_f32 v[{p+j}:{p+j+1}], v[{p+j}:{p+j+1}], s[{sL2E}:{sL2E+1}], v[{BP+2*c}:{BP+2*c+1}] op_sel_hi:[1,1,0]")
        A(f"v_fma_f32 v{PT+2}, -v{PT}, s{sL2E}, v{MN}\nv_fma_f32 v{PT+3}, -v{PT+1}, s{sL2E}, v{MN}")
        A(f"v_fma_f32 v{PT}, v{PT}, s{sL2E}, v{MX}\nv_fma_f32 v{PT+1}, v{PT+1}, s{sL2E}, v{MX}")
        for c in range(4):
            for j in range(4):
                A(f"v_exp_f32 v{P+4*c+j}, v{P+4*c+j}")
                A(f"v_exp_f32 v{EM+4*c+j}, v{EM+4*c+j}")
        for j in range(4): A(f"v_exp_f32 v{PT+j}, v{PT+j}")
        SP, SN = tmp, tmp + 4
        t2 = BP
        for c in range(4):
            p = P + 4*c; em = EM + 4*c
            A(f"v_pk_add_f32 v[{t2+2*c}:{t2+2*c+1}], v[{p}:{p+1}], v[{p+2}:{p+3}]")
            A(f"v_pk_add_f32 v[{BN+2*c}:{BN+2*c+1}], v[{em}:{em+1}], v[{em+2}:{em+3}]")
        for c in range(4):
            A(f"v_add_f32 v{SP+c}, v{t2+2*c}, v{t2+2*c+1}")
            A(f"v_add_f32 v{SN+c}, v{BN+2*c}, v{BN+2*c+1}")
        self.bfly4("v_add_f32", SP, SP+1, SP+2, SP+3)
        self.bfly4("v_add_f32", SN, SN+1, SN+2, SN+3)
        A(f"v_add_f32 v{SP}, v{SP}, v{PT}\nv_add_f32 v{SN}, v{SN}, v{PT+2}")
        A(f"v_add_f32 v{SP}, v{SP}, v{PT+1}\nv_add_f32 v{SN}, v{SN}, v{PT+3}")
        A(f"v_rcp_f32 v{SP}, v{SP}\nv_rcp_f32 v{SN}, v{SN}")
        self.bcast4(SP, BP, BP+2, BP+4, BP+6)
        self.bcast4(SN, BN, BN+2, BN+4, BN+6)
        A(f"v_mul_f32 v{PT}, v{PT}, v{SP}\nv_mul_f32 v{PT+1}, v{PT+1}, v{SP}\nv_mul_f32 v{PT+2}, v{PT+2}, v{SN}\nv_mul_f32 v{PT+3}, v{PT+3}, v{SN}")
        self.cvtpk(FT, PT, PT+1); self.cvtpk(FT+1, PT+2, PT+3)
        for c in range(4):
            p = P + 4*c; em = EM + 4*c
            self.pkmul(p, p, BP+2*c); self.pkmul(p+2, p+2, BP+2*c)
            self.pkmul(em, em, BN+2*c); self.pkmul(em+2, em+2, BN+2*c)
            f = F + 4*c
            self.cvtpk(f, p, p+1); self.cvtpk(f+1, p+2, p+3)
            self.cvtpk(f+2, em, em+1); self.cvtpk(f+3, em+2, em+3)

    def epi_B(self):
        A = self
        self.c("B epilogue")
        PK = WF
        for m in range(2):
            b = PK + 18*m
            for (o, tl) in ((0, 0), (4, 1), (6, 2), (10, 3), (12, 4), (14, 5), (2, 6), (8, 6)):
                c = acc(tl, m)
                self.cvtpk(b+o, c, c+1); self.cvtpk(b+o+1, c+2, c+3)
            A(f"v_mov_b32 v{b+16}, s{sONES}\nv_mov_b32 v{b+17}, s{sONES}")
            A(f"s_not_b64 s[{sT4}:{sT5}], s[{sGM+6}:{sGM+7}]")
            A(f"v_cndmask_b32 v{b+16}, v{b+16}, v{b+2}, s[{sT4}:{sT5}]\nv_cndmask_b32 v{b+17}, v{b+17}, v{b+3}, s[{sT4}:{sT5}]")
            A(f"ds_write_b64 v{vPKw}, v[{b+12}:{b+13}] offset:{144 + 16*SB*m}")
            A(f"ds_write_b64 v{vPKw}, v[{b+14}:{b+15}] offset:{176 + 16*SB*m}")
            A(f"ds_write_b64 v{vPKw}, v[{b+16}:{b+17}] offset:{208 + 16*SB*m}")
        PQ, PTQ, PKk, PTK = ACC, ACC+16, ACC+20, ACC+36
        for c in range(4):
            m, h = c >> 1, c & 1
            fq = PK + 18*m + 2*h; fk = PK + 18*m + 6 + 2*h
            A(f"v_mfma_f32_16x16x32_bf16 v[{PKk+4*c}:{PKk+4*c+3}], a[{AKM+4*h}:{AKM+4*h+3}], v[{fk}:{fk+3}], 0")
            A(f"v_mfma_f32_16x16x32_bf16 v[{PTK}:{PTK+3}], a[{ATK+4*c}:{ATK+4*c+3}], v[{fk}:{fk+3}], {'0' if c == 0 else f'v[{PTK}:{PTK+3}]'}")
            A(f"v_mfma_f32_16x16x32_bf16 v[{PQ+4*c}:{PQ+4*c+3}], a[{AQM+4*h}:{AQM+4*h+3}], v[{fq}:{fq+3}], 0")
            A(f"v_mfma_f32_16x16x32_bf16 v[{PTQ}:{PTQ+3}], v[{ATQ+4*c}:{ATQ+4*c+3}], v[{fq}:{fq+3}], {'0' if c == 0 else f'v[{PTQ}:{PTQ+3}]'}")
        self.dump("B_P", list(range(PQ, PQ+40)), cond_it=0)
        FK, FKT = WF + 0, WF + 16
        self.softmax_pm(PKk, PTK, FK, FKT, TMP + 20)
        for c in range(4):
            m, h = c >> 1, c & 1
            A(f"ds_write_b64 v{vPKw}, v[{FK+4*c}:{FK+4*c+1}] offset:{64*h + 16*SB*m}")
            A(f"ds_write_b64 v{vPKw}, v[{FK+4*c+2}:{FK+4*c+3}] offset:{64*h + 32 + 16*SB*m}")
        A(f"ds_write_b64 v{vPKt}, v[{FKT}:{FKT+1}]")
        FQ, FQT = WF + 20, WF + 36
        self.softmax_pm(PQ, PTQ, FQ, FQT, TMP + 20)
        self.waitl(0)
        self.barrier()
        self.c("kv partials")
        KA = ACC
        D = TMP + 0
        def rdk(s_):
            b = KA + 16*(s_ & 1)
            for hh in range(2):
                o = s_*32*SB + hh*SB
                A(f"ds_read_b64_tr_b16 v[{b+2*hh}:{b+2*hh+1}], v{vPrd} offset:{o}")
                A(f"ds_read_b64_tr_b16 v[{b+4+2*hh}:{b+4+2*hh+1}], v{vPrd} offset:{o+32}")
                A(f"ds_read_b64_tr_b16 v[{b+8+2*hh}:{b+8+2*hh+1}], v{vPrdT} offset:{o}")
                A(f"ds_read_b64_tr_b16 v[{b+12+2*hh}:{b+12+2*hh+1}], v{vPrdB} offset:{o}")
        rdk(0)
        for s_ in range(4):
            if s_ < 3: rdk(s_+1); self.waitl(8)
            else: self.waitl(0)
            b = KA + 16*(s_ & 1)
            for i in range(3):
                cc = "0" if s_ == 0 else f"v[{D+4*i}:{D+4*i+3}]"
                A(f"v_mfma_f32_16x16x32_bf16 v[{D+4*i}:{D+4*i+3}], v[{b+4*i}:{b+4*i+3}], v[{b+12}:{b+15}], {cc}")
        A(f"s_mul_i32 s{sT0}, s{sR}, 6144\ns_add_u32 s{sT0}, s{sT0}, s{sKVP}")
        for i, va in enumerate((vKV1, vKV2, vKV3)):
            A(f"buffer_store_dwordx4 v[{D+4*i}:{D+4*i+3}], v{va}, s[{sWS}:{sWS+3}], s{sT0} offen sc1")
        self.post(sFGLB, 3)
        self.wait(vFlG, "0xffff", 3)
        self.c("kv sum")
        L0 = ACC
        SUMS = TMP + 0
        bufs = [ACC, TMP + 12]
        def ldk(bi, grp):
            for i in range(4):
                rr = 4*grp + i
                A(f"s_add_u32 s{sT0}, s{sKVP}, {6144*rr}")
                for k_, va in enumerate((vKV1, vKV2, vKV3)):
                    b = bufs[bi] + 12*i + 4*k_
                    A(f"buffer_load_dwordx4 v[{b}:{b+3}], v{va}, s[{sWS}:{sWS+3}], s{sT0} offen sc1")
        ldk(0, 0); ldk(1, 1)
        for grp in range(4):
            self.waitv(12 if grp < 3 else 0)
            b = bufs[grp & 1]
            for i in range(4):
                for k_ in range(0, 12, 2):
                    if grp == 0 and i == 0: continue
                    src = (b + k_) if (grp == 0 and i == 1) else None
                    if src is not None:
                        A(f"v_pk_add_f32 v[{SUMS+k_}:{SUMS+k_+1}], v[{b+k_}:{b+k_+1}], v[{b+12+k_}:{b+12+k_+1}]")
                    else:
                        A(f"v_pk_add_f32 v[{SUMS+k_}:{SUMS+k_+1}], v[{SUMS+k_}:{SUMS+k_+1}], v[{b+12*i+k_}:{b+12*i+k_+1}]")
            if grp + 2 < 4: ldk(grp & 1, grp + 2)
        self.dump("B_KV", list(range(SUMS, SUMS+12)), cond_it=0)
        T = ACC
        self.cvtpk(T, SUMS, SUMS+1); self.cvtpk(T+1, SUMS+2, SUMS+3); self.cvtpk(T+2, SUMS+4, SUMS+5); self.cvtpk(T+3, SUMS+6, SUMS+7)
        self.cvtpk(T+4, SUMS+8, SUMS+9); self.cvtpk(T+5, SUMS+10, SUMS+11)
        a1, a2 = T + 8, T + 9
        A(f"s_lshr_b32 s{sT0}, s{sW}, 1\ns_and_b32 s{sT1}, s{sW}, 1")
        Ld1, Lj = self.newlabel("Ldt1"), self.newlabel("Ldtj")
        A(f"s_cmp_eq_u32 s{sT1}, 0\ns_cbranch_scc0 {Ld1}")
        A(f"s_lshl_b32 s{sT2}, s{sT0}, 10\ns_add_u32 s{sT2}, s{sT2}, {KT_DM}\nv_lshlrev_b32 v{a1}, 4, v{vLane}\nv_add_u32 v{a1}, s{sT2}, v{a1}")
        A(f"s_lshl_b32 s{sT2}, s{sT0}, 7\ns_add_u32 s{sT2}, s{sT2}, {KT_FDM}\nv_lshlrev_b32 v{a2}, 3, v{vM}\nv_add_u32 v{a2}, s{sT2}, v{a2}")
        A(f"ds_write_b128 v{a1}, v[{T}:{T+3}]")
        A(f"s_mov_b64 exec, s[{sGM}:{sGM+1}]")
        A(f"ds_write_b64 v{a2}, v[{T+4}:{T+5}]")
        A("s_mov_b64 exec, -1")
        A(f"s_branch {Lj}")
        self.label(Ld1)
        A(f"s_lshl_b32 s{sT2}, s{sT0}, 9\ns_add_u32 s{sT2}, s{sT2}, {KT_DT}\nv_lshlrev_b32 v{a1}, 3, v{vG}\nv_add_u32 v{a1}, v{a1}, v{vM}\nv_lshlrev_b32 v{a1}, 4, v{a1}\nv_add_u32 v{a1}, s{sT2}, v{a1}")
        A(f"s_lshl_b32 s{sT2}, s{sT0}, 6\ns_add_u32 s{sT2}, s{sT2}, {KT_FDT}\nv_lshlrev_b32 v{a2}, 3, v{vM}\nv_add_u32 v{a2}, s{sT2}, v{a2}")
        A(f"v_cmp_gt_u32 vcc, 8, v{vM}\ns_nop 1\ns_mov_b64 exec, vcc")
        A(f"ds_write_b128 v{a1}, v[{T}:{T+3}]")
        A(f"s_and_b64 exec, exec, s[{sGM}:{sGM+1}]")
        A(f"ds_write_b64 v{a2}, v[{T+4}:{T+5}]")
        A("s_mov_b64 exec, -1")
        self.label(Lj)
        A("s_nop 0")
        self.waitl(0)
        self.barrier()
        ADM, ADT, AFDM, AFDT = ACC, ACC+8, ACC+16, ACC+20
        t = ACC + 24
        A(f"v_lshlrev_b32 v{t}, 4, v{vLane}\nv_add_u32 v{t}, {KT_DM}, v{t}")
        A(f"v_and_b32 v{t+1}, 1, v{vM}\nv_and_b32 v{t+2}, 2, v{vM}\nv_cmp_eq_u32 vcc, 0, v{t+2}")
        A(f"v_mov_b32 v{t+3}, 4\nv_cndmask_b32 v{t+4}, v{t+3}, v{t+1}, vcc\nv_add_u32 v{t+1}, 2, v{t+1}\nv_cndmask_b32 v{t+5}, v{t+3}, v{t+1}, vcc")
        A(f"v_lshlrev_b32 v{t+3}, 3, v{vG}")
        for h in range(2):
            A(f"v_add_u32 v{t+6+h}, v{t+3}, v{t+4+h}\nv_lshlrev_b32 v{t+6+h}, 4, v{t+6+h}\nv_add_u32 v{t+6+h}, {KT_DT + 512*h}, v{t+6+h}")
            A(f"v_lshlrev_b32 v{t+8+h}, 3, v{t+4+h}\nv_add_u32 v{t+8+h}, {KT_FDT + 64*h}, v{t+8+h}")
        A(f"v_lshlrev_b32 v{t+10}, 3, v{vM}\nv_add_u32 v{t+10}, {KT_FDM}, v{t+10}")
        for h in range(2):
            A(f"ds_read_b128 v[{ADM+4*h}:{ADM+4*h+3}], v{t} offset:{1024*h}")
            A(f"ds_read_b128 v[{ADT+4*h}:{ADT+4*h+3}], v{t+6+h}")
            A(f"ds_read_b64 v[{AFDM+2*h}:{AFDM+2*h+1}], v{t+10} offset:{128*h}")
            A(f"ds_read_b64 v[{AFDT+2*h}:{AFDT+2*h+1}], v{t+8+h}")
        BT = ACC + 36
        for c in range(4):
            A(f"v_cndmask_b32 v{BT+2*c}, 0, v{FQT}, s[{sGM+2*c}:{sGM+2*c+1}]\nv_cndmask_b32 v{BT+2*c+1}, 0, v{FQT+1}, s[{sGM+2*c}:{sGM+2*c+1}]")
        self.waitl(0)
        DM, DT = TMP + 24, TMP + 40
        for c in range(4):
            h = c & 1
            f = FQ + 4*c
            A(f"v_mfma_f32_16x16x32_bf16 v[{DM+4*c}:{DM+4*c+3}], v[{ADM+4*h}:{ADM+4*h+3}], v[{f}:{f+3}], 0")
            A(f"v_mfma_f32_16x16x32_bf16 v[{DT+4*c}:{DT+4*c+3}], v[{ADT+4*h}:{ADT+4*h+3}], v[{f}:{f+3}], 0")
        for c in range(4):
            h = c & 1
            A(f"v_mfma_f32_16x16x16_bf16 v[{DM+4*c}:{DM+4*c+3}], v[{AFDM+2*h}:{AFDM+2*h+1}], v[{BT+2*c}:{BT+2*c+1}], v[{DM+4*c}:{DM+4*c+3}]")
            A(f"v_mfma_f32_16x16x16_bf16 v[{DT+4*c}:{DT+4*c+3}], v[{AFDT+2*h}:{AFDT+2*h+1}], v[{BT+2*c}:{BT+2*c+1}], v[{DT+4*c}:{DT+4*c+3}]")
        self.o_finish(DM, DT, lambda c: DT+4*c+2, lambda c, h: (DT+4*c, DT+4*c+1), add_eps=True)

    def gemm2_init(self):
        A = self
        X = WF + 44
        for i in range(10): A(f"v_mov_b32 v{X+i}, v{XRES+i}")
        for p in range(2):
            A(f"v_permlane16_swap_b32 v{X+4*p}, v{X+4*p+2}")
            A(f"v_permlane16_swap_b32 v{X+4*p+1}, v{X+4*p+3}")
        for i in range(10):
            A(f"v_lshlrev_b32 v{ACC+2*i}, 16, v{X+i}")
            A(f"v_and_b32 v{ACC+2*i+1}, 0xffff0000, v{X+i}")

    def gemm2(self):
        A = self
        self.c("GEMM2")
        for s_ in range(18):
            A(f"buffer_load_dwordx4 a[{4*s_}:{4*s_+3}], v{vOoff}, s[{sWS}:{sWS+3}], 0 offen offset:{64*s_} sc1")
        self.gemm2_init()
        def rd(s_, T, h):
            buf = WF + 20*(s_ & 1) + 4*T + 2*h
            off = (s_ % 9)*4608 + h*144 + 32*T
            A(f"ds_read_b64_tr_b16 v[{buf}:{buf+1}], v{vOtr[s_//9]} offset:{off}")
        for T in range(5):
            rd(0, T, 0); rd(0, T, 1)
        self.waitv(0)
        for s_ in range(18):
            for T in range(5):
                if T % 2 == 0:
                    if s_ < 17: n = 6 if T < 4 else 8
                    else: n = max(0, 6 - 2*T)
                    self.waitl(n)
                buf = WF + 20*(s_ & 1) + 4*T
                c = ACC + 4*T
                A(f"v_mfma_f32_16x16x32_bf16 v[{c}:{c+3}], v[{buf}:{buf+3}], a[{4*s_}:{4*s_+3}], v[{c}:{c+3}]")
                if s_ < 17:
                    rd(s_+1, T, 0); rd(s_+1, T, 1)

    def gemm2_epi(self, xsrd, stats_soff, last_variant=False):
        A = self
        for i in range(10): self.cvtpk(XRES+i, ACC+2*i, ACC+2*i+1)
        for p in range(2):
            A(f"v_permlane16_swap_b32 v{XRES+4*p}, v{XRES+4*p+2}")
            A(f"v_permlane16_swap_b32 v{XRES+4*p+1}, v{XRES+4*p+3}")
        pol = "sc1"
        A(f"buffer_store_dwordx4 v[{XRES}:{XRES+3}], v{vXst}, s[{xsrd}:{xsrd+3}], 0 offen {pol}")
        A(f"buffer_store_dwordx4 v[{XRES+4}:{XRES+7}], v{vXst}, s[{xsrd}:{xsrd+3}], 0 offen offset:64 {pol}")
        A(f"buffer_store_dwordx2 v[{XRES+8}:{XRES+9}], v{vXst4}, s[{xsrd}:{xsrd+3}], 0 offen {pol}")
        if stats_soff is not None:
            t = WF
            A(f"v_pk_add_f32 v[{t}:{t+1}], v[{ACC}:{ACC+1}], v[{ACC+2}:{ACC+3}]")
            A(f"v_pk_mul_f32 v[{t+2}:{t+3}], v[{ACC}:{ACC+1}], v[{ACC}:{ACC+1}]")
            A(f"v_pk_fma_f32 v[{t+2}:{t+3}], v[{ACC+2}:{ACC+3}], v[{ACC+2}:{ACC+3}], v[{t+2}:{t+3}]")
            for i in range(2, 8):
                r = ACC + 2*i
                A(f"v_pk_add_f32 v[{t}:{t+1}], v[{t}:{t+1}], v[{r}:{r+1}]")
                A(f"v_pk_fma_f32 v[{t+2}:{t+3}], v[{r}:{r+1}], v[{r}:{r+1}], v[{t+2}:{t+3}]")
            A("s_mov_b32 exec_hi, 0")
            for i in range(8, 10):
                r = ACC + 2*i
                A(f"v_pk_add_f32 v[{t}:{t+1}], v[{t}:{t+1}], v[{r}:{r+1}]")
                A(f"v_pk_fma_f32 v[{t+2}:{t+3}], v[{r}:{r+1}], v[{r}:{r+1}], v[{t+2}:{t+3}]")
            A("s_mov_b32 exec_hi, -1")
            A(f"v_add_f32 v{t}, v{t}, v{t+1}\nv_add_f32 v{t+1}, v{t+2}, v{t+3}")
            self.bfly2_half("v_add_f32", t, t+1, t+2)
            A(f"buffer_store_dword v{t}, v{vSst}, s[{sWS}:{sWS+3}], s{stats_soff} offen sc1")

    def front(self, xsrd, stats_sreg, halo, pwait, pollv, pollmask):
        A = self
        self.wait(pollv, pollmask, pwait)
        self.load_x(xsrd, "sc1")
        for t in range(2):
            A(f"buffer_load_dwordx4 v[{SL[t]}:{SL[t]+3}], v{vSld}, s[{sWS}:{sWS+3}], s{stats_sreg} offen offset:{1024*t} sc1")
        if halo:
            t = TMP + 41
            A(f"v_lshlrev_b32 v{t}, 6, v{vHrow}\nv_lshl_add_u32 v{t}, v{vG}, 4, v{t}")
            A(f"buffer_load_dwordx4 v[{SL[2]}:{SL[2]+3}], v{t}, s[{sWS}:{sWS+3}], s{stats_sreg} offen sc1")
            self.load_halo(xsrd, "sc1")
        self.waitv(0)
        self.stats_from_loads(3 if halo else 2)
        self.barrier()

    def body(self):
        A = self
        self.prologue()
        self.dump("X", list(range(0, 8)), kind="a")
        self.dump("LN0", [NM[0], RS[0], NM[1], RS[1], NM[2], RS[2]])
        if self.checkpoint("pro"): return
        A("L_LOOP:")
        self.gemm1()
        self.dump("A_ACC", list(range(56)), cond_it=0)
        self.dump("A_E", list(range(EA, EA+8)), cond_it=0)
        self.ln_halo()
        self.waitl(0)
        self.barrier()
        self.dma_o(sOA)
        self.ln_apply()
        self.dump("A_Y", list(range(56)), cond_it=0)
        self.dump("A_Y1", list(range(56)), cond_it=1)
        if self.checkpoint("A_ln", 0): pass
        self.epi_A()
        self.post(sFLOC, 1)
        if self.checkpoint("A_o", 0): pass
        self.wait(vFlX, "0xffff", 1)
        self.gemm2()
        self.dump("A_X", list(range(20)), cond_it=0)
        A(f"s_mov_b32 s{sSD}, {WS_S1}")
        self.gemm2_epi(sX1, sSD)
        self.post(sFLOC, 2)
        self.dma_w(sWB)
        if self.checkpoint("A_x", 0): pass
        A(f"s_mov_b32 s{sSD}, {WS_S1}")
        self.front(sX1, sSD, False, 2, vFlX, "0xffff")
        self.gemm1()
        self.waitl(0)
        self.barrier()
        self.dma_o(sOB)
        self.ln_apply()
        self.dump("B_Y", list(range(56)), cond_it=0)
        self.epi_B()
        self.post(sFLOC, 4)
        if self.checkpoint("B_o", 0): pass
        self.wait(vFlX, "0xffff", 4)
        self.gemm2()
        self.dump("B_X", list(range(20)), cond_it=0)
        Lfin = self.newlabel("Lfin")
        A(f"s_cmp_eq_u32 s{sIT}, 1\ns_cbranch_scc1 {Lfin}")
        A(f"s_mov_b32 s{sSD}, {WS_S2}")
        self.gemm2_epi(sXD, sSD)
        self.post(sFLOC, 5)
        self.dma_w(sWA)
        if self.checkpoint("B_x", 0): pass
        A(f"s_mov_b32 s{sXS}, s{sXD}\ns_mov_b32 s{sXS+1}, s{sXD+1}")
        A(f"s_mov_b32 s{sXD}, s{sOUT}\ns_mov_b32 s{sXD+1}, s{sOUT+1}")
        A(f"s_add_u32 s{sKVP}, s{sKVP}, {16*16*6144}")
        A(f"s_mov_b32 s{sIT}, 1")
        self.front(sXS, sSS, True, -3, vFlX, f"s[{sPOLLX}:{sPOLLX+1}]")
        A("s_branch L_LOOP")
        self.label(Lfin)
        A("s_nop 7")
        for i in range(10): self.cvtpk(XRES+i, ACC+2*i, ACC+2*i+1)
        for p in range(2):
            A(f"v_permlane16_swap_b32 v{XRES+4*p}, v{XRES+4*p+2}")
            A(f"v_permlane16_swap_b32 v{XRES+4*p+1}, v{XRES+4*p+3}")
        A(f"buffer_store_dwordx4 v[{XRES}:{XRES+3}], v{vXst}, s[{sOUT}:{sOUT+3}], 0 offen")
        A(f"buffer_store_dwordx4 v[{XRES+4}:{XRES+7}], v{vXst}, s[{sOUT}:{sOUT+3}], 0 offen offset:64")
        A(f"buffer_store_dwordx2 v[{XRES+8}:{XRES+9}], v{vXst4}, s[{sOUT}:{sOUT+3}], 0 offen")
        Le = self.newlabel("Lep")
        A(f"s_or_b32 s{sT0}, s2, s{sW}\ns_cmp_eq_u32 s{sT0}, 0\ns_cbranch_scc0 {Le}")
        A(f"s_add_u32 s{sT1}, s{sT}, 63\nv_mov_b32 v1, s{sT1}\ns_mov_b32 s{sT2}, {FL_EPOCH}")
        A("s_mov_b64 exec, 1")
        A(f"buffer_store_dword v1, v{vZero}, s[{sWS}:{sWS+3}], s{sT2} offen sc1")
        A("s_mov_b64 exec, -1")
        self.label(Le)

    def finish(self):
        A = self
        A("L_END:")
        if self.ts or self.dbg or self.stop:
            A("s_waitcnt vmcnt(0) lgkmcnt(0)")
            A(f"s_lshl_b32 s{sT0}, s2, 2\ns_add_u32 s{sT0}, s{sT0}, s{sW}\ns_lshl_b32 s{sT0}, s{sT0}, 8\ns_add_u32 s{sT0}, s{sT0}, 0x0F000000")
            A(f"v_lshlrev_b32 v1, 2, v{vLane}")
            A(f"buffer_store_dword v{vExA}, v1, s[{sWS}:{sWS+3}], s{sT0} offen")
            A(f"s_add_u32 s{sT0}, s{sT0}, 0x00100000\nv_mov_b32 v2, s{sTMO}")
            A(f"buffer_store_dword v2, v1, s[{sWS}:{sWS+3}], s{sT0} offen")
        A("s_waitcnt vmcnt(0)")
        A("L_EXIT:")

def header():
    ref = open(f"cdna_kernels/{BASE}.s.ref").read().split("\n")
    out = []
    for l in ref:
        if l.startswith("; @launch"):
            out.append(f"; @launch grid=(256,1,1) block=(256,1,1) lds={LDS_BYTES}")
            break
        out.append(l)
    return "\n".join(out)

def build(stop=None, dumps=(), ts=False):
    g = Gen(stop=stop, dumps=dumps, ts=ts)
    g.body()
    g.finish()
    rep = {}
    lines = fix_hazards(g.lines, rep)
    txt = header() + f"""
.amdgcn_target "amdgcn-amd-amdhsa--gfx950"
.text
.globl {NAME}
.p2align 8
.type {NAME},@function
{NAME}:
""" + "\n".join(("    " + l if not l.endswith(":") else l) for l in lines) + f"""
    s_endpgm
.section .rodata,"a"
.p2align 6
.amdhsa_kernel {NAME}
  .amdhsa_next_free_vgpr 512
  .amdhsa_next_free_sgpr 102
  .amdhsa_accum_offset 256
  .amdhsa_group_segment_fixed_size 0
  .amdhsa_kernarg_size 80
  .amdhsa_user_sgpr_count 2
  .amdhsa_user_sgpr_kernarg_segment_ptr 1
  .amdhsa_system_sgpr_workgroup_id_x 1
.end_amdhsa_kernel
"""
    return txt, g.dbg, rep

if __name__ == "__main__":
    import argparse
    ap = argparse.ArgumentParser()
    ap.add_argument("-o", default=f"cdna_kernels/{BASE}.s")
    ap.add_argument("--stop", default=None)
    ap.add_argument("--dumps", default="")
    ap.add_argument("--ts", action="store_true")
    a_ = ap.parse_args()
    txt, dbg, rep = build(a_.stop, [d for d in a_.dumps.split(",") if d], a_.ts)
    open(a_.o, "w").write(txt)
    json.dump(dbg, open(a_.o + ".json", "w"))
    print("lines", txt.count("\n"), "nop states", rep)
```

```python
import sys, math, json
sys.path.insert(0, "work")
from asmlib import *

BASE = "interleave_layers__sliding_local_dilated__linear_kernel_hedgehog__prompt"
NAME = BASE + "_kernel"

ROWB = 1152
WROW = 3456
XBYTES = 2048 * ROWB
WBYTES = 576 * WROW
OBYTES = 576 * ROWB
WS_O = 0
WS_X1 = 0x240000
WS_X2 = 0x480000
WS_S1 = 0x6C0000
WS_S2 = 0x6E0000
WS_KVP = 0x700000
WS_FL = 0xA00000
FL_LOC = WS_FL + 0x0000
FL_GLB = WS_FL + 0x1000
FL_S0 = WS_FL + 0x2000
FL_EPOCH = WS_FL + 0x4000
WS_DBG = 0x1000000
WS_SIZE = 0x10000000
OOB = 0x40000000

WSTR = 240
LWO = 55296; OSTR = 144
KVS = 138240; SA = 168
LCS = 162432
SB = 248
KT_DM = KVS
KT_DT = KVS + 2048
KT_FDM = KVS + 3072
KT_FDT = KVS + 3328
LDS_BYTES = 163840

sWA, sWB, sOA, sOB, sXS, sWS, sOUT, sXD, sX1 = 4, 8, 12, 16, 20, 24, 28, 32, 36
sPHI = 40
sW, sR, sJ, sIT, sT, sHALF, sCG, sTMO = 44, 45, 46, 47, 48, 49, 50, 51
sFLOC, sFGLB = 52, 53
sPOLLX = 54
sT0, sT1, sT2, sT3, sT4, sT5, sT6, sT7 = 56, 57, 58, 59, 60, 61, 62, 63
sEX60 = 64
sEXH = 66
sGM = 68
sONES = 76
sK18 = 77
sL2E = 78
sCSC = 80
sSS = 82
sKVP = 83
sWOS = 84
sWOS2 = 85
sODD = 86
sG3 = 88
sSD = 90
sEPS6 = 91
sXCC = 92
sTS = 94
sTSB = 96

ACC = 0
WF = 56
TMP = 112
vXoff = 176
vWtr = [177, 178]; vWtrT = [179, 180]
vOtr = [181, 182]
vWdma = 183; vOdma = [184, 185, 186]
vOoff = 187
vOst, vOstT, vXst, vXst4, vSst, vSld = 188, 189, 190, 191, 192, 193
vHrow = 194
vFlX, vFlG = 195, 196
vLane, vM, vG = 197, 198, 199
XRES = 200
MPREV0, MPREV, MCUR = 210, 214, 218
vG0m = 222
vKVw, vKVh, vKr, vKrT, vVtr, vVttr = 223, 224, 225, 226, 227, 228
vPKw, vPKt = 229, 230
ATQ = 232
vPrd = 248
vPrdT = 249
vPrdB = 250
vKV1, vKV2, vKV3 = 251, 252, 253
vKTw = 254
vZero = 255
vExA = 231
XF = 0; HF = 144
AQM = 216
AKM = 224
AONES = 232
ATK = 236

EA, EB = TMP + 0, TMP + 4
NM = [TMP + 8, TMP + 10, TMP + 12]
RS = [TMP + 14, TMP + 16, TMP + 18]
SL = [TMP + 20, TMP + 24, TMP + 28]

def acc(t, m): return ACC + (2 * t + m) * 4
TILE_OFF = [0, 40, 80, 120, 160, 200]
LOG2E = 1.4426950408889634
def f2u(x):
    import struct
    return struct.unpack("<I", struct.pack("<f", x))[0]

class Gen(K):
    def __init__(self, stop=None, dumps=(), ts=False):
        super().__init__()
        self.dbg = {}
        self.stop = stop
        self.dumps = set(dumps)
        self.dbgslot = 0
        self.ts = ts
        self.tsn = 0
        self.stopped = False

    def mov(self, d, x): self(f"v_mov_b32 v{d}, {x}")
    def smov(self, d, x): self(f"s_mov_b32 s{d}, {x}")
    def srd(self, d, lo, hi, size):
        self(f"s_mov_b32 s{d}, {lo}\ns_mov_b32 s{d+1}, {hi}\ns_mov_b32 s{d+2}, {size}\ns_mov_b32 s{d+3}, 0x20000")
    def srd_off(self, d, lo, hi, off, size):
        self(f"s_add_u32 s{d}, {lo}, {off}\ns_addc_u32 s{d+1}, {hi}, 0\ns_mov_b32 s{d+2}, {size}\ns_mov_b32 s{d+3}, 0x20000")
    def waitv(self, n=0): self(f"s_waitcnt vmcnt({n})")
    def waitl(self, n=0): self(f"s_waitcnt lgkmcnt({n})")
    def barrier(self): self("s_barrier")

    def dump(self, name, regs, kind="v", cond_it=None):
        if name not in self.dumps: return
        self.c(f"dump {name}")
        L = None
        if cond_it is not None:
            L = self.newlabel("Ldmp")
            self(f"s_cmp_eq_u32 s{sIT}, {cond_it}\ns_cbranch_scc0 {L}")
        self("s_waitcnt vmcnt(0) lgkmcnt(0)")
        self("s_nop 7\ns_nop 7")
        t = 175
        self(f"s_lshl_b32 s{sT0}, s2, 2\ns_add_u32 s{sT0}, s{sT0}, s{sW}\ns_lshl_b32 s{sT0}, s{sT0}, 8")
        self(f"v_lshlrev_b32 v{t}, 2, v{vLane}\nv_add_u32 v{t}, s{sT0}, v{t}")
        for r in regs:
            off = WS_DBG + self.dbgslot * 0x40000
            self(f"s_mov_b32 s{sT1}, {off}")
            if kind == "a":
                self(f"v_accvgpr_read_b32 v174, a{r}\ns_nop 1")
                self(f"buffer_store_dword v174, v{t}, s[{sWS}:{sWS+3}], s{sT1} offen")
                self("s_waitcnt vmcnt(0)")
            else:
                self(f"buffer_store_dword v{r}, v{t}, s[{sWS}:{sWS+3}], s{sT1} offen")
            self.dbg.setdefault(name, []).append(self.dbgslot)
            self.dbgslot += 1
        self("s_waitcnt vmcnt(0)")
        self("s_nop 7")
        if L: self.label(L)

    def stamp(self, name):
        if not self.ts: return
        n = self.tsn; self.tsn += 1
        assert n < 32
        self.dbg.setdefault("_ts", []).append(name)
        self(f"s_{'memrealtime' if name.startswith('RT') else 'memtime'} s[{sTS}:{sTS+1}]")
        self("s_waitcnt lgkmcnt(0)")
        self(f"s_lshl_b32 s{sTS+1}, s{sIT}, 5")
        self(f"s_add_u32 s{sTS+1}, s{sTS+1}, {n}")
        self(f"s_mov_b32 m0, s{sTS+1}")
        self(f"v_writelane_b32 v{vExA}, s{sTS}, m0")

    def checkpoint(self, name, cond_it=None):
        if self.stop == name:
            if cond_it is not None:
                L = self.newlabel("Lck")
                self(f"s_cmp_eq_u32 s{sIT}, {cond_it}\ns_cbranch_scc0 {L}")
                self("s_waitcnt vmcnt(0) lgkmcnt(0)")
                self("s_branch L_END")
                self.label(L)
            else:
                self("s_waitcnt vmcnt(0) lgkmcnt(0)")
                self("s_branch L_END")
            return True
        return False

    def bfly4(self, op, a_, b_, c_, d_):
        self(f"v_permlane16_swap_b32 v{a_}, v{b_}")
        self(f"v_permlane16_swap_b32 v{c_}, v{d_}")
        self(f"{op} v{a_}, v{a_}, v{b_}")
        self(f"{op} v{c_}, v{c_}, v{d_}")
        self(f"v_permlane32_swap_b32 v{a_}, v{c_}")
        self(f"{op} v{a_}, v{a_}, v{c_}")
    def bcast4(self, R, oA, oB, oC, oD):
        self(f"v_mov_b32 v{oA}, v{R}\nv_mov_b32 v{oB}, v{R}")
        self(f"v_permlane16_swap_b32 v{oA}, v{oB}")
        self(f"v_mov_b32 v{oC}, v{oA}\nv_mov_b32 v{oD}, v{oB}")
        self(f"v_permlane32_swap_b32 v{oA}, v{oC}")
        self(f"v_permlane32_swap_b32 v{oB}, v{oD}")
    def bfly2_half(self, op, a_, b_, t_):
        self(f"v_permlane16_swap_b32 v{a_}, v{b_}")
        self(f"{op} v{a_}, v{a_}, v{b_}")
        self(f"v_mov_b32 v{t_}, v{a_}")
        self(f"v_permlane32_swap_b32 v{a_}, v{t_}")
        self(f"{op} v{a_}, v{a_}, v{t_}")
    def bfly2(self, op, a_, b_, t_):
        self.bfly2_half(op, a_, b_, t_)
        self(f"v_mov_b32 v{b_}, v{a_}")
        self(f"v_permlane16_swap_b32 v{a_}, v{b_}")

    def flag_store(self, addr_sreg, p):
        t = TMP + 60
        self(f"s_lshl_b32 s{sT2}, s{sIT}, 3")
        self(f"s_add_u32 s{sT2}, s{sT2}, s{sT}")
        self(f"s_add_u32 s{sT2}, s{sT2}, {p}")
        self(f"s_not_b32 s{sT3}, s{sT2}")
        self(f"v_mov_b32 v{t}, s{sT2}\nv_mov_b32 v{t+1}, s{sT3}")
        self("s_mov_b64 exec, 1")
        self(f"buffer_store_dwordx2 v[{t}:{t+1}], v{vZero}, s[{sWS}:{sWS+3}], s{addr_sreg} offen sc1")
        self("s_mov_b64 exec, -1")

    def poll(self, vaddr, execmask, p):
        t = TMP + 60
        L, Ld = self.newlabel("Lpoll"), self.newlabel("Lgot")
        self(f"s_lshl_b32 s{sT2}, s{sIT}, 3")
        self(f"s_add_u32 s{sT2}, s{sT2}, s{sT}")
        if p >= 0: self(f"s_add_u32 s{sT2}, s{sT2}, {p}")
        else: self(f"s_sub_u32 s{sT2}, s{sT2}, {-p}")
        self(f"s_mov_b64 exec, {execmask}")
        self(f"s_mov_b32 s{sT3}, 0")
        self.label(L)
        self(f"buffer_load_dwordx2 v[{t}:{t+1}], v{vaddr}, s[{sWS}:{sWS+3}], 0 offen sc1")
        self("s_waitcnt vmcnt(0)")
        self(f"v_subrev_u32 v{t+2}, s{sT2}, v{t}")
        self(f"v_xor_b32 v{t+3}, v{t}, v{t+1}")
        self(f"v_cmp_gt_u32 vcc, 32, v{t+2}")
        self(f"v_cmp_eq_u32 s[{sT4}:{sT5}], -1, v{t+3}")
        self("s_nop 1")
        self(f"s_and_b64 vcc, vcc, s[{sT4}:{sT5}]")
        self("s_cmp_eq_u64 vcc, exec")
        self(f"s_cbranch_scc1 {Ld}")
        self(f"s_add_u32 s{sT3}, s{sT3}, 1")
        self(f"s_cmp_lt_u32 s{sT3}, 20000")
        self(f"s_cbranch_scc1 {L}")
        self(f"s_add_u32 s{sTMO}, s{sTMO}, 1")
        self.label(Ld)
        self("s_mov_b64 exec, -1")

    def wave0(self, fn):
        L = self.newlabel("Lw0")
        self(f"s_cmp_eq_u32 s{sW}, 0\ns_cbranch_scc0 {L}")
        fn()
        self.label(L)
        self("s_nop 0")

    def post(self, addr_sreg, p):
        self.waitv(0)
        self.barrier()
        self.wave0(lambda: self.flag_store(addr_sreg, p))

    def wait(self, vaddr, execmask, p):
        self.wave0(lambda: self.poll(vaddr, execmask, p))
        self.barrier()

    def dma_w(self, srd, u0=0, u1=36):
        self.c(f"W DMA u={u0}..{u1-1}")
        self(f"s_mul_i32 s{sWOS2}, s{sW}, 960")
        self(f"s_mov_b64 exec, s[{sEX60}:{sEX60+1}]")
        for u in range(u0, u1):
            self(f"s_add_u32 m0, s{sWOS2}, {3840*u}")
            self(f"s_mov_b32 s{sWOS}, {55296*u}")
            self(f"buffer_load_dwordx4 v{vWdma}, s[{srd}:{srd+3}], s{sWOS} offen lds")
        self("s_mov_b64 exec, -1")

    def dma_o(self, srd):
        self.c("wo DMA")
        self(f"s_lshl_b32 s{sWOS2}, s{sW}, 10")
        for u in range(9):
            for i in range(2):
                self(f"s_add_u32 m0, s{sWOS2}, {LWO + 1024*(9*u + 4*i)}")
                if i == 0: self(f"s_mov_b32 s{sWOS}, {73728*u}")
                self(f"buffer_load_dwordx4 v{vOdma[i]}, s[{srd}:{srd+3}], s{sWOS} offen lds")
        for i in range(2):
            self(f"s_add_u32 s{sT0}, s{sW}, {4*i}")
            self(f"s_mul_i32 s{sWOS}, s{sT0}, 73728")
            self(f"s_mul_i32 s{sT0}, s{sT0}, 9216")
            self(f"s_add_u32 m0, s{sT0}, {LWO + 8192}")
            self(f"buffer_load_dwordx4 v{vOdma[2]}, s[{srd}:{srd+3}], s{sWOS} offen lds")
        L = self.newlabel("Lo8")
        self(f"s_cmp_eq_u32 s{sW}, 0\ns_cbranch_scc0 {L}")
        self(f"s_mov_b32 m0, {LWO + 9216*8 + 8192}")
        self(f"s_mov_b32 s{sWOS}, {73728*8}")
        self(f"buffer_load_dwordx4 v{vOdma[2]}, s[{srd}:{srd+3}], s{sWOS} offen lds")
        self.label(L)

    def load_x(self, srd, pol=""):
        self.c("X frag loads")
        for s_ in range(18):
            for t in range(2):
                so = "0" if t == 0 else f"s{sK18}"
                self(f"buffer_load_dwordx4 a[{XF+72*t+4*s_}:{XF+72*t+4*s_+3}], v{vXoff}, s[{srd}:{srd+3}], {so} offen offset:{64*s_} {pol}")

    def load_halo(self, srd, pol=""):
        self.c("halo frag loads")
        t = TMP + 40
        self(f"v_mul_u32_u24 v{t}, {ROWB}, v{vHrow}")
        self(f"v_lshl_add_u32 v{t}, v{vG}, 4, v{t}")
        self(f"s_mov_b64 exec, s[{sEXH}:{sEXH+1}]")
        for s_ in range(18):
            self(f"buffer_load_dwordx4 a[{HF+4*s_}:{HF+4*s_+3}], v{t}, s[{srd}:{srd+3}], 0 offen offset:{64*s_} {pol}")
        self("s_mov_b64 exec, -1")

    def prologue(self):
        A = self
        A("s_cmp_ge_u32 s2, 256")
        A("s_cbranch_scc1 L_EXIT")
        A("s_load_dwordx4 s[56:59], s[0:1], 0")
        A("s_load_dwordx2 s[60:61], s[0:1], 16")
        A("s_load_dwordx4 s[64:67], s[0:1], 32")
        A("s_load_dwordx4 s[68:71], s[0:1], 48")
        A("s_load_dwordx2 s[72:73], s[0:1], 72")
        A(f"s_and_b32 s{sR}, s2, 7\ns_lshl_b32 s{sR}, s{sR}, 1\ns_lshr_b32 s3, s2, 7\ns_add_u32 s{sR}, s{sR}, s3")
        A(f"s_lshr_b32 s{sJ}, s2, 3\ns_and_b32 s{sJ}, s{sJ}, 15")
        A(f"s_lshr_b32 s{sHALF}, s{sJ}, 3\ns_and_b32 s{sCG}, s{sJ}, 7")
        A(f"v_lshrrev_b32 v1, 6, v0")
        A(f"v_and_b32 v{vLane}, 63, v0")
        A(f"v_readfirstlane_b32 s{sW}, v1")
        A(f"v_and_b32 v{vM}, 15, v{vLane}\nv_lshrrev_b32 v{vG}, 4, v{vLane}")
        A(f"v_mov_b32 v{vZero}, 0")
        A("s_waitcnt lgkmcnt(0)")
        A(f"s_mov_b32 s{sIT}, 0")
        if self.ts: A(f"v_mov_b32 v{vExA}, 0")
        self.stamp("RT0"); self.stamp("start")
        self.srd(sXS, "s56", "s57", XBYTES)
        self.srd(sWA, "s58", "s59", WBYTES)
        self.srd(sOA, "s60", "s61", OBYTES)
        self.srd(sWB, "s64", "s65", WBYTES)
        self.srd(sPHI, "s66", "s67", 20736)
        self.srd(sOB, "s68", "s69", OBYTES)
        self.srd(sOUT, "s70", "s71", XBYTES)
        self.srd(sWS, "s72", "s73", WS_SIZE)
        self.srd_off(sX1, "s72", "s73", WS_X1, XBYTES)
        self.srd_off(sXD, "s72", "s73", WS_X2, XBYTES)
        A(f"s_mov_b32 s{sEX60}, -1\ns_mov_b32 s{sEX60+1}, 0x0fffffff")
        A(f"s_mov_b32 s{sEXH}, 0xfffefffe\ns_mov_b32 s{sEXH+1}, 0xfffefffe")
        for g in range(4):
            lo = 0xffff << (16 * (g & 1)) if g < 2 else 0
            hi = 0xffff << (16 * (g & 1)) if g >= 2 else 0
            A(f"s_mov_b32 s{sGM+2*g}, {hex(lo)}\ns_mov_b32 s{sGM+2*g+1}, {hex(hi)}")
        A(f"s_mov_b32 s{sONES}, 0x3f803f80\ns_mov_b32 s{sK18}, 18432")
        A(f"s_mov_b32 s{sL2E}, {hex(f2u(LOG2E))}\ns_mov_b32 s{sL2E+1}, {hex(f2u(LOG2E))}")
        csc = f2u(18 ** -0.5 * LOG2E)
        A(f"s_mov_b32 s{sCSC}, {hex(csc)}\ns_mov_b32 s{sCSC+1}, {hex(csc)}")
        A(f"s_mov_b32 s{sEPS6}, {hex(f2u(1e-6))}")
        A(f"s_mov_b32 s{sTMO}, 0")
        A(f"v_lshrrev_b32 v1, 2, v{vM}\nv_and_b32 v2, 3, v{vLane}")
        A(f"s_lshl_b32 s3, s{sR}, 7")
        A(f"v_mul_u32_u24 v3, 69, v{vLane}\nv_lshrrev_b32 v3, 10, v3")
        A(f"v_mul_u32_u24 v4, 15, v3\nv_sub_u32 v4, v{vLane}, v4")
        A(f"v_mul_u32_u24 v5, 52, v4\nv_lshrrev_b32 v5, 8, v5")
        A(f"v_mul_u32_u24 v6, 5, v5\nv_sub_u32 v6, v4, v6")
        A(f"v_and_b32 v7, 1, v3\nv_lshlrev_b32 v7, 2, v7\nv_lshrrev_b32 v3, 1, v3\nv_add_u32 v7, v7, v3")
        A(f"s_and_b32 s{sT0}, s{sW}, 1\ns_lshl_b32 s{sT0}, s{sT0}, 1\ns_lshr_b32 s{sT1}, s{sW}, 1\ns_lshl_b32 s{sT1}, s{sT1}, 3\ns_add_u32 s{sT0}, s{sT0}, s{sT1}")
        A(f"v_add_u32 v7, s{sT0}, v7")
        A(f"s_mov_b32 s{sT2}, {WROW}\nv_mul_lo_u32 v7, v7, s{sT2}")
        A(f"v_mul_u32_u24 v5, {ROWB}, v5\nv_add_u32 v7, v7, v5\nv_lshl_add_u32 v7, v6, 4, v7")
        A(f"s_mul_i32 s{sT1}, s{sJ}, 72")
        A(f"v_add_u32 v{vWdma}, s{sT1}, v7")
        self.dma_w(sWA)
        A(f"s_lshl_b32 s{sT0}, s{sW}, 5\ns_add_u32 s{sT0}, s{sT0}, s3")
        A(f"v_add_u32 v8, s{sT0}, v{vM}")
        A(f"v_mul_u32_u24 v9, {ROWB}, v8")
        A(f"v_lshl_add_u32 v{vXoff}, v{vG}, 4, v9")
        self.load_x(sXS)
        A(f"v_mov_b32 v10, s{sONES}")
        for i in range(72): A(f"v_accvgpr_write_b32 a{HF+i}, v10")
        for i in range(4): A(f"v_accvgpr_write_b32 a{AONES+i}, v10")
        A(f"s_sub_u32 s{sT2}, s3, 16")
        A(f"v_add_u32 v{vHrow}, s{sT2}, v{vM}\nv_max_i32 v{vHrow}, 0, v{vHrow}")
        self.load_halo(sXS)
        A(f"s_mov_b32 s{sT2}, {FL_EPOCH}")
        A(f"buffer_load_dword v11, v{vZero}, s[{sWS}:{sWS+3}], s{sT2} offen sc1")
        A(f"s_mul_i32 s{sT1}, s{sJ}, 72")
        A(f"v_add_u32 v{vOst}, s{sT1}, v9")
        A(f"v_add_u32 v12, 32, v{vOst}")
        A(f"v_mov_b32 v13, {OOB}")
        A(f"v_cndmask_b32 v{vOstT}, v13, v12, s[{sGM}:{sGM+1}]")
        A(f"v_lshl_add_u32 v{vOst}, v{vG}, 3, v{vOst}")
        A(f"v_lshlrev_b32 v12, 6, v8\nv_lshl_add_u32 v{vSld}, v{vG}, 4, v12")
        A(f"s_lshl_b32 s{sT0}, s{sHALF}, 6\ns_add_u32 s{sT0}, s{sT0}, s3\ns_lshl_b32 s{sT1}, s{sW}, 4\ns_add_u32 s{sT0}, s{sT0}, s{sT1}")
        A(f"v_add_u32 v14, s{sT0}, v{vM}")
        A(f"v_mul_u32_u24 v15, {ROWB}, v14")
        A(f"v_lshl_add_u32 v{vOoff}, v{vG}, 4, v15")
        A(f"s_mul_i32 s{sT1}, s{sCG}, 144")
        A(f"v_add_u32 v15, s{sT1}, v15")
        A(f"v_and_b32 v16, 1, v{vG}\nv_lshrrev_b32 v17, 1, v{vG}")
        A(f"v_lshl_add_u32 v{vXst}, v16, 5, v15\nv_lshl_add_u32 v{vXst}, v17, 4, v{vXst}")
        A(f"v_lshl_add_u32 v18, v{vG}, 3, v15\nv_add_u32 v18, 128, v18")
        A(f"v_cmp_gt_u32 vcc, 2, v{vG}")
        A(f"v_cndmask_b32 v{vXst4}, v13, v18, vcc")
        A(f"v_lshlrev_b32 v18, 6, v14\nv_lshl_add_u32 v18, v{vG}, 2, v18\ns_lshl_b32 s{sT1}, s{sCG}, 3\nv_add_u32 v18, s{sT1}, v18")
        A(f"v_cndmask_b32 v{vSst}, v13, v18, vcc")
        A(f"buffer_load_dwordx4 v[{XRES}:{XRES+3}], v{vXst}, s[{sXS}:{sXS+3}], 0 offen")
        A(f"buffer_load_dwordx4 v[{XRES+4}:{XRES+7}], v{vXst}, s[{sXS}:{sXS+3}], 0 offen offset:64")
        A(f"buffer_load_dwordx2 v[{XRES+8}:{XRES+9}], v{vXst4}, s[{sXS}:{sXS+3}], 0 offen")
        PH = 120
        A(f"s_lshl_b32 s{sT0}, s{sJ}, 1\ns_mul_i32 s{sT0}, s{sT0}, 648")
        A(f"v_mul_u32_u24 v19, 144, v{vG}")
        A(f"v_lshl_add_u32 v20, v{vM}, 1, v19")
        A(f"v_and_b32 v21, 1, v{vM}\nv_lshlrev_b32 v21, 1, v21\nv_add_u32 v21, 32, v21")
        A(f"v_add_u32 v22, v19, v21")
        A(f"v_lshlrev_b32 v23, 1, v{vM}")
        for h in range(2):
            for st in range(2):
                vm = 20 if st == 0 else 22
                vt = 23 if st == 0 else 21
                for e in range(6):
                    if e < 4: d0 = e + (2 if h else 0); vv = vm
                    else: d0 = (16 + e - 4) if h == 0 else (e - 4); vv = vt
                    off = h * 648 + d0 * 36
                    A(f"buffer_load_ushort v{PH+(h*2+st)*6+e}, v{vv}, s[{sPHI}:{sPHI+3}], s{sT0} offen offset:{off}")
        A(f"v_lshlrev_b32 v24, 3, v{vG}\nv_lshl_add_u32 v24, v1, 1, v24")
        A(f"v_mul_u32_u24 v25, {WSTR}, v24")
        A(f"v_lshl_add_u32 v{vWtr[0]}, v2, 3, v25\nv_add_u32 v{vWtr[1]}, {9*7680}, v{vWtr[0]}")
        A(f"v_mul_u32_u24 v26, 80, v2\nv_cmp_eq_u32 vcc, 3, v2\nv_cndmask_b32 v26, v26, v{vZero}, vcc")
        A(f"v_add_u32 v26, 32, v26\nv_add_u32 v{vWtrT[0]}, v25, v26\nv_add_u32 v{vWtrT[1]}, {9*7680}, v{vWtrT[0]}")
        A(f"v_mul_u32_u24 v25, {OSTR}, v24\nv_lshl_add_u32 v25, v2, 3, v25")
        A(f"v_add_u32 v{vOtr[0]}, {LWO}, v25\nv_add_u32 v{vOtr[1]}, {LWO + 9*4608}, v25")
        for i in range(3):
            if i < 2:
                A(f"s_add_u32 s{sT0}, s{sW}, {4*i}\ns_lshl_b32 s{sT0}, s{sT0}, 6")
                A(f"v_add_u32 v26, s{sT0}, v{vLane}")
            else:
                A(f"v_add_u32 v26, 512, v{vLane}")
            A(f"v_mul_u32_u24 v27, 7282, v26\nv_lshrrev_b32 v27, 16, v27")
            A(f"v_mul_u32_u24 v28, 9, v27\nv_sub_u32 v28, v26, v28")
            A(f"v_and_b32 v29, 56, v27\nv_and_b32 v30, 1, v27\nv_lshl_add_u32 v29, v30, 2, v29")
            A(f"v_and_b32 v30, 7, v27\nv_lshrrev_b32 v30, 1, v30\nv_add_u32 v29, v29, v30")
            A(f"v_mul_u32_u24 v29, {ROWB}, v29\nv_lshl_add_u32 v29, v28, 4, v29")
            A(f"s_mul_i32 s{sT1}, s{sCG}, 144\nv_add_u32 v{vOdma[i]}, s{sT1}, v29")
        A(f"s_lshl_b32 s{sT0}, s{sW}, 5")
        A(f"v_add_u32 v26, s{sT0}, v{vM}")
        A(f"v_mul_u32_u24 v27, {SA}, v26")
        A(f"v_lshl_add_u32 v28, v{vG}, 3, v27")
        A(f"v_add_u32 v{vKr}, {KVS}, v28\nv_add_u32 v{vKVw}, {KVS + 16*SA}, v28\nv_add_u32 v{vKrT}, {KVS + 136}, v27")
        A(f"v_mul_u32_u24 v27, {SA}, v{vM}\nv_lshl_add_u32 v27, v{vG}, 3, v27\ns_lshl_b32 s{sT1}, s{sW}, 5\ns_add_u32 s{sT1}, s{sT1}, {KVS}\nv_add_u32 v{vKVh}, s{sT1}, v27")
        A(f"v_lshl_add_u32 v27, v{vG}, 2, v1\nv_add_u32 v27, s{sT0}, v27\nv_mul_u32_u24 v27, {SA}, v27")
        A(f"v_add_u32 v{vVttr}, {KVS + 144}, v27\nv_lshl_add_u32 v27, v2, 3, v27\nv_add_u32 v{vVtr}, {KVS + 64}, v27")
        A(f"v_cndmask_b32 v{vG0m}, 0, -1, s[{sGM}:{sGM+1}]")
        A(f"v_lshlrev_b32 v27, 2, v{vG}\nv_sub_u32 v27, v{vM}, v27")
        A(f"v_mov_b32 v28, {hex(f2u(-1e30))}")
        for j in range(4):
            A(f"v_subrev_u32 v29, {j}, v27")
            A(f"v_and_b32 v30, 1, v29")
            A(f"v_cmp_eq_u32 s[{sT4}:{sT5}], 0, v30")
            A(f"v_cmp_le_i32 vcc, 0, v29")
            A(f"s_and_b64 vcc, vcc, s[{sT4}:{sT5}]")
            A(f"v_cndmask_b32 v{MCUR+j}, v28, v{vZero}, vcc")
            A(f"v_cmp_ge_i32 vcc, -2, v29")
            A(f"s_and_b64 vcc, vcc, s[{sT4}:{sT5}]")
            A(f"v_cndmask_b32 v{MPREV+j}, v28, v{vZero}, vcc")
        A(f"s_or_b32 s{sT0}, s{sR}, s{sW}\ns_cmp_eq_u32 s{sT0}, 0\ns_cselect_b64 vcc, -1, 0")
        for j in range(4): A(f"v_cndmask_b32 v{MPREV0+j}, v{MPREV+j}, v28, vcc")
        A(f"s_lshl_b32 s{sT0}, s{sW}, 5")
        A(f"v_add_u32 v26, s{sT0}, v{vM}\nv_mul_u32_u24 v26, {SB}, v26\nv_lshl_add_u32 v{vPKw}, v{vG}, 3, v26")
        A(f"v_lshrrev_b32 v27, 1, v{vG}\nv_lshlrev_b32 v27, 4, v27\nv_add_u32 v27, v27, v{vM}\nv_add_u32 v27, s{sT0}, v27")
        A(f"v_mul_u32_u24 v27, {SB}, v27\nv_and_b32 v28, 1, v{vG}\nv_lshl_add_u32 v27, v28, 3, v27\nv_add_u32 v{vPKt}, 128, v27")
        A(f"v_and_b32 v27, 1, v{vG}\nv_lshlrev_b32 v27, 4, v27\nv_lshl_add_u32 v27, v1, 2, v27\nv_lshrrev_b32 v28, 1, v{vG}\nv_lshl_add_u32 v27, v28, 1, v27")
        A(f"v_mul_u32_u24 v27, {SB}, v27")
        A(f"s_lshr_b32 s{sT0}, s{sW}, 1\ns_and_b32 s{sT1}, s{sW}, 1")
        A(f"s_lshl_b32 s{sT2}, s{sT0}, 6\nv_lshl_add_u32 v28, v2, 3, v27\nv_add_u32 v{vPrd}, s{sT2}, v28")
        A(f"s_lshl_b32 s{sT2}, s{sT0}, 3\ns_add_u32 s{sT2}, s{sT2}, 128\nv_add_u32 v{vPrdT}, s{sT2}, v27")
        A(f"s_lshl_b32 s{sT2}, s{sT0}, 5\ns_add_u32 s{sT2}, s{sT2}, 144\nv_add_u32 v28, s{sT2}, v28")
        A(f"v_cmp_eq_u32 vcc, 0, v2\nv_mov_b32 v29, 232\nv_mov_b32 v30, 224\nv_cndmask_b32 v29, v29, v30, vcc\nv_add_u32 v29, v29, v27")
        A(f"s_cmp_eq_u32 s{sT1}, 0\ns_cselect_b64 vcc, -1, 0\nv_cndmask_b32 v{vPrdB}, v29, v28, vcc")
        A(f"v_lshlrev_b32 v26, 4, v{vLane}")
        A(f"v_mul_u32_u24 v27, 5, v{vG}\nv_add_u32 v27, v27, v{vM}\nv_lshlrev_b32 v27, 4, v27\nv_add_u32 v27, 2304, v27")
        A(f"v_cmp_gt_u32 s[{sT4}:{sT5}], 5, v{vM}")
        A(f"v_cndmask_b32 v27, v13, v27, s[{sT4}:{sT5}]")
        A(f"v_cndmask_b32 v{vKV1}, v27, v26, vcc")
        A(f"s_mul_i32 s{sT2}, s{sT0}, 3072")
        A(f"v_add_u32 v{vKV1}, s{sT2}, v{vKV1}")
        A(f"v_mov_b32 v28, 320\nv_mov_b32 v29, 1024\nv_cndmask_b32 v28, v28, v29, vcc\nv_add_u32 v{vKV2}, v28, v{vKV1}")
        A(f"v_lshlrev_b32 v28, 4, v{vM}\nv_add_u32 v29, 2944, v28\nv_cndmask_b32 v29, v13, v29, s[{sT4}:{sT5}]\nv_add_u32 v28, 2048, v28\nv_cndmask_b32 v28, v29, v28, vcc")
        A(f"v_add_u32 v28, s{sT2}, v28\nv_cndmask_b32 v{vKV3}, v13, v28, s[{sGM}:{sGM+1}]")
        A(f"s_lshl_b32 s{sT0}, s{sR}, 7\ns_add_u32 s{sT0}, s{sT0}, {FL_LOC}\ns_lshl_b32 s{sT1}, s{sJ}, 3\ns_add_u32 s{sFLOC}, s{sT0}, s{sT1}")
        A(f"v_lshlrev_b32 v26, 3, v{vLane}\nv_add_u32 v{vFlX}, s{sT0}, v26")
        A(f"v_subrev_u32 v27, {128 + 64}, v{vFlX}\nv_cmp_lt_u32 vcc, 15, v{vLane}\nv_cndmask_b32 v{vFlX}, v{vFlX}, v27, vcc")
        A(f"s_lshl_b32 s{sT0}, s{sJ}, 7\ns_add_u32 s{sT0}, s{sT0}, {FL_GLB}\ns_lshl_b32 s{sT1}, s{sR}, 3\ns_add_u32 s{sFGLB}, s{sT0}, s{sT1}")
        A(f"v_add_u32 v{vFlG}, s{sT0}, v26")
        A(f"s_mov_b32 s{sT0}, 0xffffff\ns_cmp_eq_u32 s{sR}, 0\ns_cselect_b32 s{sPOLLX}, 0xffff, s{sT0}\ns_mov_b32 s{sPOLLX+1}, 0")
        A(f"s_mul_i32 s{sKVP}, s{sJ}, {16*6144}\ns_add_u32 s{sKVP}, s{sKVP}, {WS_KVP}")
        A(f"s_mov_b32 s{sSS}, {WS_S2}")
        self.stamp("pro_issued")
        self.waitv(0)
        self.stamp("pro_loaded")
        A(f"v_readfirstlane_b32 s{sT}, v11")
        A(f"s_add_u32 s{sT}, s{sT}, 1")
        CM = 150
        for h in range(2):
            for st in range(2):
                b = PH + (h*2+st)*6; c = CM + (h*2+st)*3
                for e in range(3):
                    A(f"v_lshl_or_b32 v{c+e}, v{b+2*e+1}, 16, v{b+2*e}")
        for h in range(2):
            cm = CM + (h*2+0)*3
            for (dst, grp) in ((AQM, 0), (AKM, 1)):
                A(f"v_cndmask_b32 v26, 0, v{cm+2}, s[{sGM+2*grp}:{sGM+2*grp+1}]")
                if h == 0: regs = [f"v{cm}", f"v{cm+1}", "v26", f"v{vZero}"]
                else: regs = [f"v{vZero}", "v26", f"v{cm}", f"v{cm+1}"]
                for i in range(4): A(f"v_accvgpr_write_b32 a{dst+4*h+i}, {regs[i]}")
        for c in range(4):
            h = c & 1
            cm = CM + (h*2+1)*3
            A(f"v_lshrrev_b32 v27, 1, v{vM}\nv_cmp_eq_u32 vcc, {2*c}, v27")
            A(f"v_cndmask_b32 v28, 0, v{cm}, vcc\nv_cndmask_b32 v29, 0, v{cm+1}, vcc\nv_cndmask_b32 v30, 0, v{cm+2}, vcc")
            for (isq, grp) in ((1, 0), (0, 1)):
                A(f"v_cndmask_b32 v26, 0, v30, s[{sGM+2*grp}:{sGM+2*grp+1}]")
                if h == 0: regs = ["v28", "v29", "v26", f"v{vZero}"]
                else: regs = [f"v{vZero}", "v26", "v28", "v29"]
                for i in range(4):
                    if isq: A(f"v_mov_b32 v{ATQ+4*c+i}, {regs[i]}")
                    else: A(f"v_accvgpr_write_b32 a{ATK+4*c+i}, {regs[i]}")
        self.c("layer-0 stats")
        S1 = [TMP + 32, TMP + 36, TMP + 40]; S2 = [TMP + 44, TMP + 48, TMP + 52]
        for s_ in range(18):
            for t in range(3):
                x = (XF + 72*t + 4*s_) if t < 2 else (HF + 4*s_)
                c1 = "0" if s_ == 0 else f"v[{S1[t]}:{S1[t]+3}]"; c2 = "0" if s_ == 0 else f"v[{S2[t]}:{S2[t]+3}]"
                A(f"v_mfma_f32_16x16x32_bf16 v[{S1[t]}:{S1[t]+3}], a[{AONES}:{AONES+3}], a[{x}:{x+3}], {c1}")
                A(f"v_mfma_f32_16x16x32_bf16 v[{S2[t]}:{S2[t]+3}], a[{x}:{x+3}], a[{x}:{x+3}], {c2}")
        A(f"v_and_b32 v26, 3, v{vM}")
        A(f"v_cmp_eq_u32 s[{sT4}:{sT5}], v1, v{vG}")
        for t in range(3):
            d = S2[t]
            for j in range(1, 4):
                A(f"v_cmp_eq_u32 vcc, {j}, v26\nv_cndmask_b32 v{d}, v{d}, v{d+j}, vcc")
            A(f"v_cndmask_b32 v{d}, 0, v{d}, s[{sT4}:{sT5}]")
            A(f"v_mov_b32 v{d+1}, v{d}\nv_permlane16_swap_b32 v{d}, v{d+1}\nv_add_f32 v{d}, v{d}, v{d+1}")
            A(f"v_mov_b32 v{d+1}, v{d}\nv_permlane32_swap_b32 v{d}, v{d+1}\nv_add_f32 v{d}, v{d}, v{d+1}")
            self.ln_params(S1[t], d, t)
        self.barrier()

    def ln_params(self, sx, sxx, t):
        A = self
        inv = hex(f2u(1.0 / 576))
        A(f"v_mul_f32 v{NM[t]}, {hex(f2u(-1.0/576))}, v{sx}")
        A(f"v_mul_f32 v{sxx}, {inv}, v{sxx}")
        A(f"v_fma_f32 v{sxx}, -v{NM[t]}, v{NM[t]}, v{sxx}")
        A(f"v_max_f32 v{sxx}, 0, v{sxx}")
        A(f"v_add_f32 v{sxx}, {hex(f2u(1e-5))}, v{sxx}")
        A(f"v_rsq_f32 v{RS[t]}, v{sxx}")

    def stats_from_loads(self, n):
        A = self
        for t in range(n):
            b = SL[t]
            A(f"v_add_f32 v{b}, v{b}, v{b+2}\nv_add_f32 v{b+1}, v{b+1}, v{b+3}")
            self.bfly2("v_add_f32", b, b+1, b+2)
            self.ln_params(b, b+1, t)

    def gemm1(self):
        A = self
        self.c("GEMM1 main loop")
        def rd(s_, t, h):
            buf = WF + 28*(s_ & 1) + 4*t + 2*h
            base = (vWtr if t < 6 else vWtrT)[s_ // 9]
            off = (s_ % 9) * 7680 + h * 240 + (TILE_OFF[t] if t < 6 else 0)
            A(f"ds_read_b64_tr_b16 v[{buf}:{buf+1}], v{base} offset:{off}")
        for t in range(7):
            rd(0, t, 0); rd(0, t, 1)
        for s_ in range(18):
            for t in range(7):
                if t % 2 == 0:
                    if s_ < 17: n = 10 if t < 6 else 12
                    else: n = max(0, 10 - 2*t)
                    self.waitl(n)
                buf = WF + 28*(s_ & 1) + 4*t
                for m in range(2):
                    x = XF + m*72 + s_*4
                    c = acc(t, m)
                    cc = "0" if s_ == 0 else f"v[{c}:{c+3}]"
                    A(f"v_mfma_f32_16x16x32_bf16 v[{c}:{c+3}], v[{buf}:{buf+3}], a[{x}:{x+3}], {cc}")
                    if s_ < 17: rd(s_+1, t, m)
        self.c("extra pass")
        tA, tB = TMP + 32, TMP + 34
        A(f"s_mul_i32 s{sT0}, s{sW}, 40\ns_add_u32 s{sT1}, s{sT0}, 80")
        for i in range(2):
            A(f"v_add_u32 v{tA+i}, s{sT1}, v{vWtr[i]}")
            A(f"v_add_u32 v{tB+i}, s{sT0}, v{vWtr[i]}")
        A(f"s_cmp_ge_u32 s{sW}, 2\ns_cselect_b64 vcc, -1, 0")
        for i in range(2):
            A(f"v_cndmask_b32 v{tB+i}, v{tB+i}, v{vWtrT[i]}, vcc")
        NB = 3
        def rde(s_):
            b = WF + 8*(s_ % NB)
            for (ad, o) in ((tA, 0), (tB, 4)):
                for h in range(2):
                    A(f"ds_read_b64_tr_b16 v[{b+o+2*h}:{b+o+2*h+1}], v{ad + s_//9} offset:{(s_%9)*7680 + h*240}")
        rde(0); rde(1)
        for s_ in range(18):
            if s_ + 2 < 18: rde(s_+2); self.waitl(8)
            elif s_ + 1 < 18: self.waitl(4)
            else: self.waitl(0)
            b = WF + 8*(s_ % NB)
            x = HF + 4*s_
            ca = "0" if s_ == 0 else f"v[{EA}:{EA+3}]"; cb = "0" if s_ == 0 else f"v[{EB}:{EB+3}]"
            A(f"v_mfma_f32_16x16x32_bf16 v[{EA}:{EA+3}], v[{b}:{b+3}], a[{x}:{x+3}], {ca}")
            A(f"v_mfma_f32_16x16x32_bf16 v[{EB}:{EB+3}], v[{b+4}:{b+7}], a[{x}:{x+3}], {cb}")
        t = TMP + 36
        A(f"s_add_u32 s{sT0}, s{sW}, 2\ns_lshl_b32 s{sT0}, s{sT0}, 6\ns_add_u32 s{sT0}, s{sT0}, {LCS}")
        A(f"s_add_u32 s{sT1}, s{sW}, 4\ns_cmp_ge_u32 s{sW}, 2\ns_cselect_b32 s{sT1}, s{sT1}, s{sW}\ns_lshl_b32 s{sT1}, s{sT1}, 6\ns_add_u32 s{sT1}, s{sT1}, {LCS}")
        A(f"v_lshlrev_b32 v{t}, 4, v{vG}\nv_add_u32 v{t+1}, s{sT1}, v{t}\nv_add_u32 v{t}, s{sT0}, v{t}")
        A(f"s_not_b64 exec, s[{sEXH}:{sEXH+1}]")
        A(f"ds_write_b128 v{t}, v[{EA}:{EA+3}]")
        A(f"ds_write_b128 v{t+1}, v[{EB}:{EB+3}]")
        A("s_mov_b64 exec, -1")

    def pkfma(self, d, a_, b_pair, c_, nb=False):
        self(f"v_pk_fma_f32 v[{d}:{d+1}], v[{a_}:{a_+1}], v[{b_pair}:{b_pair+1}], v[{c_}:{c_+1}] op_sel_hi:[1,0,1]")
    def pkmul(self, d, a_, b_pair):
        self(f"v_pk_mul_f32 v[{d}:{d+1}], v[{a_}:{a_+1}], v[{b_pair}:{b_pair+1}] op_sel_hi:[1,0]")

    def ln_halo(self):
        A = self
        t = TMP + 40
        for (E, off) in ((EA, 0), (EB, 4)):
            for j in range(4):
                A(f"v_mov_b32_dpp v{t+off+j}, v{E+j} row_newbcast:0 row_mask:0xf bank_mask:0xf")
            for j in range(0, 4, 2):
                self.pkfma(E+j, t+off+j, NM[2], E+j)
                self.pkmul(E+j, E+j, RS[2])
            A(f"v_cvt_pk_bf16_f32 v{t+off}, v{E}, v{E+1}\nv_cvt_pk_bf16_f32 v{t+off+1}, v{E+2}, v{E+3}")
        A(f"ds_write_b64 v{vKVh}, v[{t}:{t+1}]")
        L = self.newlabel("Lht")
        A(f"s_cmp_eq_u32 s{sW}, 2\ns_cbranch_scc0 {L}")
        A(f"ds_write_b64 v{vKVh}, v[{t+4}:{t+5}] offset:64")
        self.label(L)

    def ln_apply(self):
        A = self
        t = TMP + 36
        A(f"v_lshlrev_b32 v{t}, 4, v{vG}\nv_add_u32 v{t}, {LCS}, v{t}")
        for tl in range(7):
            A(f"ds_read_b128 v[{WF+4*tl}:{WF+4*tl+3}], v{t} offset:{64*tl}")
        for tl in range(7):
            self.waitl(6 - tl)
            for m in range(2):
                c = acc(tl, m)
                for j in (0, 2):
                    self.pkfma(c+j, WF+4*tl+j, NM[m], c+j)
                    self.pkmul(c+j, c+j, RS[m])

    def cvtpk(self, d, a_, b_): self(f"v_cvt_pk_bf16_f32 v{d}, v{a_}, v{b_}")

    def epi_A(self):
        A = self
        self.c("A epilogue")
        P = WF + 28
        QF = TMP + 36
        for m in range(2):
            b = P + 10*m
            for i, tl in enumerate((2, 3, 4, 5, 6)):
                c = acc(tl, m)
                self.cvtpk(b+2*i, c, c+1); self.cvtpk(b+2*i+1, c+2, c+3)
            for i in range(5):
                A(f"ds_write_b64 v{vKVw}, v[{b+2*i}:{b+2*i+1}] offset:{32*i + 2688*m}")
            q = QF + 8*m
            c0, c1 = acc(0, m), acc(1, m)
            self.cvtpk(q, c0, c0+1); self.cvtpk(q+1, c0+2, c0+3)
            self.cvtpk(q+6, c1, c1+1); self.cvtpk(q+7, c1+2, c1+3)
            A(f"v_and_b32 v{q+2}, v{vG0m}, v{b+8}\nv_and_b32 v{q+5}, v{vG0m}, v{b+9}")
            A(f"v_mov_b32 v{q+3}, 0\nv_mov_b32 v{q+4}, 0")
        self.waitl(0)
        self.barrier()
        KF = ACC
        for kt in range(3):
            b = KF + 6*kt
            A(f"ds_read_b64 v[{b}:{b+1}], v{vKr} offset:{2688*kt}")
            A(f"ds_read_b64 v[{b+2}:{b+3}], v{vKrT} offset:{2688*kt}")
            A(f"ds_read_b64 v[{b+4}:{b+5}], v{vKr} offset:{2688*kt + 32}")
        VF = ACC + 20
        VT = ACC + 32
        for h in range(2):
            for kt in range(3):
                b = VF + 6*h + 2*kt
                A(f"ds_read_b64_tr_b16 v[{b}:{b+1}], v{vVtr} offset:{2688*kt + 32*h}")
        for kt in range(3):
            A(f"ds_read_b64_tr_b16 v[{VT+2*kt}:{VT+2*kt+1}], v{vVttr} offset:{2688*kt}")
        S = WF
        self.waitl(9)
        for t in range(2):
            for h in range(2):
                c = 2*t + h
                q = QF + 8*t + 4*h
                kp = KF + 6*t + 2*h; kc = KF + 6*(t+1) + 2*h
                mp = MPREV0 if t == 0 else MPREV
                A(f"v_mfma_f32_16x16x32_bf16 v[{S+8*c}:{S+8*c+3}], v[{kp}:{kp+3}], v[{q}:{q+3}], v[{mp}:{mp+3}]")
                A(f"v_mfma_f32_16x16x32_bf16 v[{S+8*c+4}:{S+8*c+7}], v[{kc}:{kc+3}], v[{q}:{q+3}], v[{MCUR}:{MCUR+3}]")
        self.dump("A_S", [S+i for i in range(32)], cond_it=0)
        MX = WF + 32
        for c in range(4):
            s_ = S + 8*c
            A(f"v_max3_f32 v{MX+c}, v{s_}, v{s_+1}, v{s_+2}")
            A(f"v_max3_f32 v{MX+c}, v{MX+c}, v{s_+3}, v{s_+4}")
            A(f"v_max3_f32 v{MX+c}, v{MX+c}, v{s_+5}, v{s_+6}")
            A(f"v_max_f32 v{MX+c}, v{MX+c}, v{s_+7}")
        self.bfly4("v_max_f32", MX, MX+1, MX+2, MX+3)
        A(f"v_mul_f32 v{MX}, s{sCSC}, v{MX}")
        A(f"v_sub_f32 v{MX}, 0, v{MX}")
        MB = WF + 40
        self.bcast4(MX, MB, MB+2, MB+4, MB+6)
        for c in range(4):
            s_ = S + 8*c
            for j in range(0, 8, 2):
                A(f"v_pk_fma_f32 v[{s_+j}:{s_+j+1}], v[{s_+j}:{s_+j+1}], s[{sCSC}:{sCSC+1}], v[{MB+2*c}:{MB+2*c+1}] op_sel_hi:[1,1,0]")
            for j in range(8): A(f"v_exp_f32 v{s_+j}, v{s_+j}")
        PF = ACC + 40
        for c in range(4):
            s_ = S + 8*c
            for i in range(4): self.cvtpk(PF+4*c+i, s_+2*i, s_+2*i+1)
        self.waitl(0)
        O = WF
        for c in range(4):
            t, h = c >> 1, c & 1
            p = PF + 4*c
            vf = VF + 6*h + 2*t
            A(f"v_mfma_f32_16x16x32_bf16 v[{O+32+4*c}:{O+32+4*c+3}], a[{AONES}:{AONES+3}], v[{p}:{p+3}], 0")
            A(f"v_mfma_f32_16x16x32_bf16 v[{O+4*c}:{O+4*c+3}], v[{vf}:{vf+3}], v[{p}:{p+3}], 0")
            A(f"v_mfma_f32_16x16x32_bf16 v[{O+16+4*c}:{O+16+4*c+3}], v[{VT+2*t}:{VT+2*t+3}], v[{p}:{p+3}], 0")
        self.o_finish(O, O+16, lambda c: O+32+4*c, lambda c, h: (O+16+4*c+2*h, O+16+4*c+2*h+1))

    def o_finish(self, O, OT, den, tails, add_eps=False):
        A = self
        R = TMP + 0
        OP = TMP + 8
        for c in range(4):
            if add_eps:
                A(f"v_add_f32 v{R+2*c}, s{sEPS6}, v{den(c)}")
                A(f"v_rcp_f32 v{R+2*c}, v{R+2*c}")
            else:
                A(f"v_rcp_f32 v{R+2*c}, v{den(c)}")
        for c in range(4):
            t, h = c >> 1, c & 1
            o = O + 4*c
            self.pkmul(o, o, R+2*c); self.pkmul(o+2, o+2, R+2*c)
            a_, b_ = tails(c, h)
            self.pkmul(a_, a_, R+2*c)
            self.cvtpk(OP+2*c, o, o+1); self.cvtpk(OP+2*c+1, o+2, o+3)
            self.cvtpk(OP+8+c, a_, b_)
        A(f"s_mov_b32 s{sT0}, {WS_O}\ns_mov_b32 s{sT1}, {WS_O + 18432}")
        for c in range(4):
            t, h = c >> 1, c & 1
            A(f"buffer_store_dwordx2 v[{OP+2*c}:{OP+2*c+1}], v{vOst}, s[{sWS}:{sWS+3}], s{sT0+t} offen offset:{40*h} sc1")
        for t in range(2):
            A(f"buffer_store_dwordx2 v[{OP+8+2*t}:{OP+9+2*t}], v{vOstT}, s[{sWS}:{sWS+3}], s{sT0+t} offen sc1")

    def softmax_pm(self, P, PT, F, FT, tmp):
        A = self
        MX, MN = tmp, tmp + 4
        for c in range(4):
            p = P + 4*c
            A(f"v_max3_f32 v{MX+c}, v{p}, v{p+1}, v{p+2}\nv_max_f32 v{MX+c}, v{MX+c}, v{p+3}")
            A(f"v_min3_f32 v{MN+c}, v{p}, v{p+1}, v{p+2}\nv_min_f32 v{MN+c}, v{MN+c}, v{p+3}")
        self.bfly4("v_max_f32", MX, MX+1, MX+2, MX+3)
        self.bfly4("v_min_f32", MN, MN+1, MN+2, MN+3)
        A(f"v_max3_f32 v{MX}, v{MX}, v{PT}, v{PT+1}\nv_min3_f32 v{MN}, v{MN}, v{PT}, v{PT+1}")
        A(f"v_mul_f32 v{MX}, s{sL2E}, v{MX}\nv_mul_f32 v{MN}, s{sL2E}, v{MN}")
        A(f"v_sub_f32 v{MX}, 0, v{MX}")
        BP, BN = tmp + 8, tmp + 16
        self.bcast4(MX, BP, BP+2, BP+4, BP+6)
        self.bcast4(MN, BN, BN+2, BN+4, BN+6)
        EM = tmp + 24
        for c in range(4):
            p = P + 4*c; em = EM + 4*c
            for j in (0, 2):
                A(f"v_pk_fma_f32 v[{em+j}:{em+j+1}], v[{p+j}:{p+j+1}], s[{sL2E}:{sL2E+1}], v[{BN+2*c}:{BN+2*c+1}] op_sel_hi:[1,1,0] neg_lo:[1,0,0] neg_hi:[1,0,0]")
                A(f"v_pk_fma_f32 v[{p+j}:{p+j+1}], v[{p+j}:{p+j+1}], s[{sL2E}:{sL2E+1}], v[{BP+2*c}:{BP+2*c+1}] op_sel_hi:[1,1,0]")
        A(f"v_fma_f32 v{PT+2}, -v{PT}, s{sL2E}, v{MN}\nv_fma_f32 v{PT+3}, -v{PT+1}, s{sL2E}, v{MN}")
        A(f"v_fma_f32 v{PT}, v{PT}, s{sL2E}, v{MX}\nv_fma_f32 v{PT+1}, v{PT+1}, s{sL2E}, v{MX}")
        for c in range(4):
            for j in range(4):
                A(f"v_exp_f32 v{P+4*c+j}, v{P+4*c+j}")
                A(f"v_exp_f32 v{EM+4*c+j}, v{EM+4*c+j}")
        for j in range(4): A(f"v_exp_f32 v{PT+j}, v{PT+j}")
        SP, SN = tmp, tmp + 4
        t2 = BP
        for c in range(4):
            p = P + 4*c; em = EM + 4*c
            A(f"v_pk_add_f32 v[{t2+2*c}:{t2+2*c+1}], v[{p}:{p+1}], v[{p+2}:{p+3}]")
            A(f"v_pk_add_f32 v[{BN+2*c}:{BN+2*c+1}], v[{em}:{em+1}], v[{em+2}:{em+3}]")
        for c in range(4):
            A(f"v_add_f32 v{SP+c}, v{t2+2*c}, v{t2+2*c+1}")
            A(f"v_add_f32 v{SN+c}, v{BN+2*c}, v{BN+2*c+1}")
        self.bfly4("v_add_f32", SP, SP+1, SP+2, SP+3)
        self.bfly4("v_add_f32", SN, SN+1, SN+2, SN+3)
        A(f"v_add_f32 v{SP}, v{SP}, v{PT}\nv_add_f32 v{SN}, v{SN}, v{PT+2}")
        A(f"v_add_f32 v{SP}, v{SP}, v{PT+1}\nv_add_f32 v{SN}, v{SN}, v{PT+3}")
        A(f"v_rcp_f32 v{SP}, v{SP}\nv_rcp_f32 v{SN}, v{SN}")
        self.bcast4(SP, BP, BP+2, BP+4, BP+6)
        self.bcast4(SN, BN, BN+2, BN+4, BN+6)
        A(f"v_mul_f32 v{PT}, v{PT}, v{SP}\nv_mul_f32 v{PT+1}, v{PT+1}, v{SP}\nv_mul_f32 v{PT+2}, v{PT+2}, v{SN}\nv_mul_f32 v{PT+3}, v{PT+3}, v{SN}")
        self.cvtpk(FT, PT, PT+1); self.cvtpk(FT+1, PT+2, PT+3)
        for c in range(4):
            p = P + 4*c; em = EM + 4*c
            self.pkmul(p, p, BP+2*c); self.pkmul(p+2, p+2, BP+2*c)
            self.pkmul(em, em, BN+2*c); self.pkmul(em+2, em+2, BN+2*c)
            f = F + 4*c
            self.cvtpk(f, p, p+1); self.cvtpk(f+1, p+2, p+3)
            self.cvtpk(f+2, em, em+1); self.cvtpk(f+3, em+2, em+3)

    def epi_B(self):
        A = self
        self.c("B epilogue")
        PK = WF
        for m in range(2):
            b = PK + 18*m
            for (o, tl) in ((0, 0), (4, 1), (6, 2), (10, 3), (12, 4), (14, 5), (2, 6), (8, 6)):
                c = acc(tl, m)
                self.cvtpk(b+o, c, c+1); self.cvtpk(b+o+1, c+2, c+3)
            A(f"v_mov_b32 v{b+16}, s{sONES}\nv_mov_b32 v{b+17}, s{sONES}")
            A(f"s_not_b64 s[{sT4}:{sT5}], s[{sGM+6}:{sGM+7}]")
            A(f"v_cndmask_b32 v{b+16}, v{b+16}, v{b+2}, s[{sT4}:{sT5}]\nv_cndmask_b32 v{b+17}, v{b+17}, v{b+3}, s[{sT4}:{sT5}]")
            A(f"ds_write_b64 v{vPKw}, v[{b+12}:{b+13}] offset:{144 + 16*SB*m}")
            A(f"ds_write_b64 v{vPKw}, v[{b+14}:{b+15}] offset:{176 + 16*SB*m}")
            A(f"ds_write_b64 v{vPKw}, v[{b+16}:{b+17}] offset:{208 + 16*SB*m}")
        PQ, PTQ, PKk, PTK = ACC, ACC+16, ACC+20, ACC+36
        for c in range(4):
            m, h = c >> 1, c & 1
            fq = PK + 18*m + 2*h; fk = PK + 18*m + 6 + 2*h
            A(f"v_mfma_f32_16x16x32_bf16 v[{PKk+4*c}:{PKk+4*c+3}], a[{AKM+4*h}:{AKM+4*h+3}], v[{fk}:{fk+3}], 0")
            A(f"v_mfma_f32_16x16x32_bf16 v[{PTK}:{PTK+3}], a[{ATK+4*c}:{ATK+4*c+3}], v[{fk}:{fk+3}], {'0' if c == 0 else f'v[{PTK}:{PTK+3}]'}")
            A(f"v_mfma_f32_16x16x32_bf16 v[{PQ+4*c}:{PQ+4*c+3}], a[{AQM+4*h}:{AQM+4*h+3}], v[{fq}:{fq+3}], 0")
            A(f"v_mfma_f32_16x16x32_bf16 v[{PTQ}:{PTQ+3}], v[{ATQ+4*c}:{ATQ+4*c+3}], v[{fq}:{fq+3}], {'0' if c == 0 else f'v[{PTQ}:{PTQ+3}]'}")
        self.dump("B_P", list(range(PQ, PQ+40)), cond_it=0)
        FK, FKT = WF + 0, WF + 16
        self.softmax_pm(PKk, PTK, FK, FKT, TMP + 20)
        for c in range(4):
            m, h = c >> 1, c & 1
            A(f"ds_write_b64 v{vPKw}, v[{FK+4*c}:{FK+4*c+1}] offset:{64*h + 16*SB*m}")
            A(f"ds_write_b64 v{vPKw}, v[{FK+4*c+2}:{FK+4*c+3}] offset:{64*h + 32 + 16*SB*m}")
        A(f"ds_write_b64 v{vPKt}, v[{FKT}:{FKT+1}]")
        FQ, FQT = WF + 20, WF + 36
        self.softmax_pm(PQ, PTQ, FQ, FQT, TMP + 20)
        self.waitl(0)
        self.barrier()
        self.c("kv partials")
        KA = ACC
        D = TMP + 0
        def rdk(s_):
            b = KA + 16*(s_ & 1)
            for hh in range(2):
                o = s_*32*SB + hh*SB
                A(f"ds_read_b64_tr_b16 v[{b+2*hh}:{b+2*hh+1}], v{vPrd} offset:{o}")
                A(f"ds_read_b64_tr_b16 v[{b+4+2*hh}:{b+4+2*hh+1}], v{vPrd} offset:{o+32}")
                A(f"ds_read_b64_tr_b16 v[{b+8+2*hh}:{b+8+2*hh+1}], v{vPrdT} offset:{o}")
                A(f"ds_read_b64_tr_b16 v[{b+12+2*hh}:{b+12+2*hh+1}], v{vPrdB} offset:{o}")
        rdk(0)
        for s_ in range(4):
            if s_ < 3: rdk(s_+1); self.waitl(8)
            else: self.waitl(0)
            b = KA + 16*(s_ & 1)
            for i in range(3):
                cc = "0" if s_ == 0 else f"v[{D+4*i}:{D+4*i+3}]"
                A(f"v_mfma_f32_16x16x32_bf16 v[{D+4*i}:{D+4*i+3}], v[{b+4*i}:{b+4*i+3}], v[{b+12}:{b+15}], {cc}")
        A(f"s_mul_i32 s{sT0}, s{sR}, 6144\ns_add_u32 s{sT0}, s{sT0}, s{sKVP}")
        for i, va in enumerate((vKV1, vKV2, vKV3)):
            A(f"buffer_store_dwordx4 v[{D+4*i}:{D+4*i+3}], v{va}, s[{sWS}:{sWS+3}], s{sT0} offen sc1")
        self.stamp("B_kvp")
        self.post(sFGLB, 3)
        self.stamp("B_kvpost")
        self.wait(vFlG, "0xffff", 3)
        self.stamp("B_kvwait")
        self.c("kv sum")
        L0 = ACC
        SUMS = TMP + 0
        bufs = [ACC, TMP + 12]
        def ldk(bi, grp):
            for i in range(4):
                rr = 4*grp + i
                A(f"s_add_u32 s{sT0}, s{sKVP}, {6144*rr}")
                for k_, va in enumerate((vKV1, vKV2, vKV3)):
                    b = bufs[bi] + 12*i + 4*k_
                    A(f"buffer_load_dwordx4 v[{b}:{b+3}], v{va}, s[{sWS}:{sWS+3}], s{sT0} offen sc1")
        ldk(0, 0); ldk(1, 1)
        for grp in range(4):
            self.waitv(12 if grp < 3 else 0)
            b = bufs[grp & 1]
            for i in range(4):
                for k_ in range(0, 12, 2):
                    if grp == 0 and i == 0: continue
                    src = (b + k_) if (grp == 0 and i == 1) else None
                    if src is not None:
                        A(f"v_pk_add_f32 v[{SUMS+k_}:{SUMS+k_+1}], v[{b+k_}:{b+k_+1}], v[{b+12+k_}:{b+12+k_+1}]")
                    else:
                        A(f"v_pk_add_f32 v[{SUMS+k_}:{SUMS+k_+1}], v[{SUMS+k_}:{SUMS+k_+1}], v[{b+12*i+k_}:{b+12*i+k_+1}]")
            if grp + 2 < 4: ldk(grp & 1, grp + 2)
        self.stamp("B_kvsum")
        self.dump("B_KV", list(range(SUMS, SUMS+12)), cond_it=0)
        T = ACC
        self.cvtpk(T, SUMS, SUMS+1); self.cvtpk(T+1, SUMS+2, SUMS+3); self.cvtpk(T+2, SUMS+4, SUMS+5); self.cvtpk(T+3, SUMS+6, SUMS+7)
        self.cvtpk(T+4, SUMS+8, SUMS+9); self.cvtpk(T+5, SUMS+10, SUMS+11)
        a1, a2 = T + 8, T + 9
        A(f"s_lshr_b32 s{sT0}, s{sW}, 1\ns_and_b32 s{sT1}, s{sW}, 1")
        Ld1, Lj = self.newlabel("Ldt1"), self.newlabel("Ldtj")
        A(f"s_cmp_eq_u32 s{sT1}, 0\ns_cbranch_scc0 {Ld1}")
        A(f"s_lshl_b32 s{sT2}, s{sT0}, 10\ns_add_u32 s{sT2}, s{sT2}, {KT_DM}\nv_lshlrev_b32 v{a1}, 4, v{vLane}\nv_add_u32 v{a1}, s{sT2}, v{a1}")
        A(f"s_lshl_b32 s{sT2}, s{sT0}, 7\ns_add_u32 s{sT2}, s{sT2}, {KT_FDM}\nv_lshlrev_b32 v{a2}, 3, v{vM}\nv_add_u32 v{a2}, s{sT2}, v{a2}")
        A(f"ds_write_b128 v{a1}, v[{T}:{T+3}]")
        A(f"s_mov_b64 exec, s[{sGM}:{sGM+1}]")
        A(f"ds_write_b64 v{a2}, v[{T+4}:{T+5}]")
        A("s_mov_b64 exec, -1")
        A(f"s_branch {Lj}")
        self.label(Ld1)
        A(f"s_lshl_b32 s{sT2}, s{sT0}, 9\ns_add_u32 s{sT2}, s{sT2}, {KT_DT}\nv_lshlrev_b32 v{a1}, 3, v{vG}\nv_add_u32 v{a1}, v{a1}, v{vM}\nv_lshlrev_b32 v{a1}, 4, v{a1}\nv_add_u32 v{a1}, s{sT2}, v{a1}")
        A(f"s_lshl_b32 s{sT2}, s{sT0}, 6\ns_add_u32 s{sT2}, s{sT2}, {KT_FDT}\nv_lshlrev_b32 v{a2}, 3, v{vM}\nv_add_u32 v{a2}, s{sT2}, v{a2}")
        A(f"v_cmp_gt_u32 vcc, 8, v{vM}\ns_nop 1\ns_mov_b64 exec, vcc")
        A(f"ds_write_b128 v{a1}, v[{T}:{T+3}]")
        A(f"s_and_b64 exec, exec, s[{sGM}:{sGM+1}]")
        A(f"ds_write_b64 v{a2}, v[{T+4}:{T+5}]")
        A("s_mov_b64 exec, -1")
        self.label(Lj)
        A("s_nop 0")
        self.waitl(0)
        self.barrier()
        ADM, ADT, AFDM, AFDT = ACC, ACC+8, ACC+16, ACC+20
        t = ACC + 24
        A(f"v_lshlrev_b32 v{t}, 4, v{vLane}\nv_add_u32 v{t}, {KT_DM}, v{t}")
        A(f"v_and_b32 v{t+1}, 1, v{vM}\nv_and_b32 v{t+2}, 2, v{vM}\nv_cmp_eq_u32 vcc, 0, v{t+2}")
        A(f"v_mov_b32 v{t+3}, 4\nv_cndmask_b32 v{t+4}, v{t+3}, v{t+1}, vcc\nv_add_u32 v{t+1}, 2, v{t+1}\nv_cndmask_b32 v{t+5}, v{t+3}, v{t+1}, vcc")
        A(f"v_lshlrev_b32 v{t+3}, 3, v{vG}")
        for h in range(2):
            A(f"v_add_u32 v{t+6+h}, v{t+3}, v{t+4+h}\nv_lshlrev_b32 v{t+6+h}, 4, v{t+6+h}\nv_add_u32 v{t+6+h}, {KT_DT + 512*h}, v{t+6+h}")
            A(f"v_lshlrev_b32 v{t+8+h}, 3, v{t+4+h}\nv_add_u32 v{t+8+h}, {KT_FDT + 64*h}, v{t+8+h}")
        A(f"v_lshlrev_b32 v{t+10}, 3, v{vM}\nv_add_u32 v{t+10}, {KT_FDM}, v{t+10}")
        for h in range(2):
            A(f"ds_read_b128 v[{ADM+4*h}:{ADM+4*h+3}], v{t} offset:{1024*h}")
            A(f"ds_read_b128 v[{ADT+4*h}:{ADT+4*h+3}], v{t+6+h}")
            A(f"ds_read_b64 v[{AFDM+2*h}:{AFDM+2*h+1}], v{t+10} offset:{128*h}")
            A(f"ds_read_b64 v[{AFDT+2*h}:{AFDT+2*h+1}], v{t+8+h}")
        BT = ACC + 36
        for c in range(4):
            A(f"v_cndmask_b32 v{BT+2*c}, 0, v{FQT}, s[{sGM+2*c}:{sGM+2*c+1}]\nv_cndmask_b32 v{BT+2*c+1}, 0, v{FQT+1}, s[{sGM+2*c}:{sGM+2*c+1}]")
        self.waitl(0)
        DM, DT = TMP + 24, TMP + 40
        for c in range(4):
            h = c & 1
            f = FQ + 4*c
            A(f"v_mfma_f32_16x16x32_bf16 v[{DM+4*c}:{DM+4*c+3}], v[{ADM+4*h}:{ADM+4*h+3}], v[{f}:{f+3}], 0")
            A(f"v_mfma_f32_16x16x32_bf16 v[{DT+4*c}:{DT+4*c+3}], v[{ADT+4*h}:{ADT+4*h+3}], v[{f}:{f+3}], 0")
        for c in range(4):
            h = c & 1
            A(f"v_mfma_f32_16x16x16_bf16 v[{DM+4*c}:{DM+4*c+3}], v[{AFDM+2*h}:{AFDM+2*h+1}], v[{BT+2*c}:{BT+2*c+1}], v[{DM+4*c}:{DM+4*c+3}]")
            A(f"v_mfma_f32_16x16x16_bf16 v[{DT+4*c}:{DT+4*c+3}], v[{AFDT+2*h}:{AFDT+2*h+1}], v[{BT+2*c}:{BT+2*c+1}], v[{DT+4*c}:{DT+4*c+3}]")
        self.o_finish(DM, DT, lambda c: DT+4*c+2, lambda c, h: (DT+4*c, DT+4*c+1), add_eps=True)

    def gemm2_init(self):
        A = self
        X = WF + 44
        for i in range(10): A(f"v_mov_b32 v{X+i}, v{XRES+i}")
        for p in range(2):
            A(f"v_permlane16_swap_b32 v{X+4*p}, v{X+4*p+2}")
            A(f"v_permlane16_swap_b32 v{X+4*p+1}, v{X+4*p+3}")
        for i in range(10):
            A(f"v_lshlrev_b32 v{ACC+2*i}, 16, v{X+i}")
            A(f"v_and_b32 v{ACC+2*i+1}, 0xffff0000, v{X+i}")

    def gemm2(self):
        A = self
        self.c("GEMM2")
        for s_ in range(18):
            A(f"buffer_load_dwordx4 a[{4*s_}:{4*s_+3}], v{vOoff}, s[{sWS}:{sWS+3}], 0 offen offset:{64*s_} sc1")
        self.gemm2_init()
        def rd(s_, T, h):
            buf = WF + 20*(s_ & 1) + 4*T + 2*h
            off = (s_ % 9)*4608 + h*144 + 32*T
            A(f"ds_read_b64_tr_b16 v[{buf}:{buf+1}], v{vOtr[s_//9]} offset:{off}")
        for T in range(5):
            rd(0, T, 0); rd(0, T, 1)
        self.waitv(0)
        for s_ in range(18):
            for T in range(5):
                if T % 2 == 0:
                    if s_ < 17: n = 6 if T < 4 else 8
                    else: n = max(0, 6 - 2*T)
                    self.waitl(n)
                buf = WF + 20*(s_ & 1) + 4*T
                c = ACC + 4*T
                A(f"v_mfma_f32_16x16x32_bf16 v[{c}:{c+3}], v[{buf}:{buf+3}], a[{4*s_}:{4*s_+3}], v[{c}:{c+3}]")
                if s_ < 17:
                    rd(s_+1, T, 0); rd(s_+1, T, 1)

    def gemm2_epi(self, xsrd, stats_soff, last_variant=False):
        A = self
        for i in range(10): self.cvtpk(XRES+i, ACC+2*i, ACC+2*i+1)
        for p in range(2):
            A(f"v_permlane16_swap_b32 v{XRES+4*p}, v{XRES+4*p+2}")
            A(f"v_permlane16_swap_b32 v{XRES+4*p+1}, v{XRES+4*p+3}")
        pol = "sc1"
        A(f"buffer_store_dwordx4 v[{XRES}:{XRES+3}], v{vXst}, s[{xsrd}:{xsrd+3}], 0 offen {pol}")
        A(f"buffer_store_dwordx4 v[{XRES+4}:{XRES+7}], v{vXst}, s[{xsrd}:{xsrd+3}], 0 offen offset:64 {pol}")
        A(f"buffer_store_dwordx2 v[{XRES+8}:{XRES+9}], v{vXst4}, s[{xsrd}:{xsrd+3}], 0 offen {pol}")
        if stats_soff is not None:
            t = WF
            A(f"v_pk_add_f32 v[{t}:{t+1}], v[{ACC}:{ACC+1}], v[{ACC+2}:{ACC+3}]")
            A(f"v_pk_mul_f32 v[{t+2}:{t+3}], v[{ACC}:{ACC+1}], v[{ACC}:{ACC+1}]")
            A(f"v_pk_fma_f32 v[{t+2}:{t+3}], v[{ACC+2}:{ACC+3}], v[{ACC+2}:{ACC+3}], v[{t+2}:{t+3}]")
            for i in range(2, 8):
                r = ACC + 2*i
                A(f"v_pk_add_f32 v[{t}:{t+1}], v[{t}:{t+1}], v[{r}:{r+1}]")
                A(f"v_pk_fma_f32 v[{t+2}:{t+3}], v[{r}:{r+1}], v[{r}:{r+1}], v[{t+2}:{t+3}]")
            A("s_mov_b32 exec_hi, 0")
            for i in range(8, 10):
                r = ACC + 2*i
                A(f"v_pk_add_f32 v[{t}:{t+1}], v[{t}:{t+1}], v[{r}:{r+1}]")
                A(f"v_pk_fma_f32 v[{t+2}:{t+3}], v[{r}:{r+1}], v[{r}:{r+1}], v[{t+2}:{t+3}]")
            A("s_mov_b32 exec_hi, -1")
            A(f"v_add_f32 v{t}, v{t}, v{t+1}\nv_add_f32 v{t+1}, v{t+2}, v{t+3}")
            self.bfly2_half("v_add_f32", t, t+1, t+2)
            A(f"buffer_store_dword v{t}, v{vSst}, s[{sWS}:{sWS+3}], s{stats_soff} offen sc1")

    def front(self, xsrd, stats_sreg, halo, pwait, pollv, pollmask, nm):
        A = self
        self.wait(pollv, pollmask, pwait)
        self.stamp(nm + "_xwait")
        self.load_x(xsrd, "sc1")
        for t in range(2):
            A(f"buffer_load_dwordx4 v[{SL[t]}:{SL[t]+3}], v{vSld}, s[{sWS}:{sWS+3}], s{stats_sreg} offen offset:{1024*t} sc1")
        if halo:
            t = TMP + 41
            A(f"v_lshlrev_b32 v{t}, 6, v{vHrow}\nv_lshl_add_u32 v{t}, v{vG}, 4, v{t}")
            A(f"buffer_load_dwordx4 v[{SL[2]}:{SL[2]+3}], v{t}, s[{sWS}:{sWS+3}], s{stats_sreg} offen sc1")
            self.load_halo(xsrd, "sc1")
        self.waitv(0)
        self.stamp(nm + "_xload")
        self.stats_from_loads(3 if halo else 2)
        self.barrier()

    def body(self):
        A = self
        self.prologue()
        self.dump("X", list(range(0, 8)), kind="a")
        self.dump("LN0", [NM[0], RS[0], NM[1], RS[1], NM[2], RS[2]])
        if self.checkpoint("pro"): return
        A("L_LOOP:")
        self.stamp("A_start")
        self.gemm1()
        self.stamp("A_g1")
        self.dump("A_ACC", list(range(56)), cond_it=0)
        self.dump("A_E", list(range(EA, EA+8)), cond_it=0)
        self.ln_halo()
        self.waitl(0)
        self.barrier()
        self.stamp("A_B1")
        self.dma_o(sOA)
        self.ln_apply()
        self.stamp("A_ln")
        self.dump("A_Y", list(range(56)), cond_it=0)
        self.dump("A_Y1", list(range(56)), cond_it=1)
        if self.checkpoint("A_ln", 0): pass
        self.epi_A()
        self.stamp("A_epi")
        self.post(sFLOC, 1)
        self.stamp("A_post")
        if self.checkpoint("A_o", 0): pass
        self.wait(vFlX, "0xffff", 1)
        self.stamp("A_wait")
        self.gemm2()
        self.stamp("A_g2")
        self.dump("A_X", list(range(20)), cond_it=0)
        A(f"s_mov_b32 s{sSD}, {WS_S1}")
        self.gemm2_epi(sX1, sSD)
        self.post(sFLOC, 2)
        self.stamp("A_xpost")
        self.dma_w(sWB)
        if self.checkpoint("A_x", 0): pass
        A(f"s_mov_b32 s{sSD}, {WS_S1}")
        self.front(sX1, sSD, False, 2, vFlX, "0xffff", "B")
        self.stamp("B_start")
        self.gemm1()
        self.stamp("B_g1")
        self.waitl(0)
        self.barrier()
        self.dma_o(sOB)
        self.ln_apply()
        self.stamp("B_ln")
        self.dump("B_Y", list(range(56)), cond_it=0)
        self.epi_B()
        self.stamp("B_epi")
        self.post(sFLOC, 4)
        self.stamp("B_post")
        if self.checkpoint("B_o", 0): pass
        self.wait(vFlX, "0xffff", 4)
        self.stamp("B_wait")
        self.gemm2()
        self.stamp("B_g2")
        self.dump("B_X", list(range(20)), cond_it=0)
        Lfin = self.newlabel("Lfin")
        A(f"s_cmp_eq_u32 s{sIT}, 1\ns_cbranch_scc1 {Lfin}")
        A(f"s_mov_b32 s{sSD}, {WS_S2}")
        self.gemm2_epi(sXD, sSD)
        self.post(sFLOC, 5)
        self.stamp("B_xpost")
        self.dma_w(sWA)
        if self.checkpoint("B_x", 0): pass
        A(f"s_mov_b32 s{sXS}, s{sXD}\ns_mov_b32 s{sXS+1}, s{sXD+1}")
        A(f"s_mov_b32 s{sXD}, s{sOUT}\ns_mov_b32 s{sXD+1}, s{sOUT+1}")
        A(f"s_add_u32 s{sKVP}, s{sKVP}, {16*16*6144}")
        A(f"s_mov_b32 s{sIT}, 1")
        self.front(sXS, sSS, True, -3, vFlX, f"s[{sPOLLX}:{sPOLLX+1}]", "A")
        A("s_branch L_LOOP")
        self.label(Lfin)
        A("s_nop 7")
        for i in range(10): self.cvtpk(XRES+i, ACC+2*i, ACC+2*i+1)
        for p in range(2):
            A(f"v_permlane16_swap_b32 v{XRES+4*p}, v{XRES+4*p+2}")
            A(f"v_permlane16_swap_b32 v{XRES+4*p+1}, v{XRES+4*p+3}")
        A(f"buffer_store_dwordx4 v[{XRES}:{XRES+3}], v{vXst}, s[{sOUT}:{sOUT+3}], 0 offen")
        A(f"buffer_store_dwordx4 v[{XRES+4}:{XRES+7}], v{vXst}, s[{sOUT}:{sOUT+3}], 0 offen offset:64")
        A(f"buffer_store_dwordx2 v[{XRES+8}:{XRES+9}], v{vXst4}, s[{sOUT}:{sOUT+3}], 0 offen")
        Le = self.newlabel("Lep")
        A(f"s_or_b32 s{sT0}, s2, s{sW}\ns_cmp_eq_u32 s{sT0}, 0\ns_cbranch_scc0 {Le}")
        A(f"s_add_u32 s{sT1}, s{sT}, 63\nv_mov_b32 v1, s{sT1}\ns_mov_b32 s{sT2}, {FL_EPOCH}")
        A("s_mov_b64 exec, 1")
        A(f"buffer_store_dword v1, v{vZero}, s[{sWS}:{sWS+3}], s{sT2} offen sc1")
        A("s_mov_b64 exec, -1")
        self.label(Le)

    def finish(self):
        A = self
        A("L_END:")
        self.stamp("end"); self.stamp("RT1")
        if self.ts or self.dbg or self.stop:
            A("s_waitcnt vmcnt(0) lgkmcnt(0)")
            A(f"s_lshl_b32 s{sT0}, s2, 2\ns_add_u32 s{sT0}, s{sT0}, s{sW}\ns_lshl_b32 s{sT0}, s{sT0}, 8\ns_add_u32 s{sT0}, s{sT0}, 0x0F000000")
            A(f"v_lshlrev_b32 v1, 2, v{vLane}")
            A(f"buffer_store_dword v{vExA}, v1, s[{sWS}:{sWS+3}], s{sT0} offen")
            A(f"s_add_u32 s{sT0}, s{sT0}, 0x00100000\nv_mov_b32 v2, s{sTMO}")
            A(f"buffer_store_dword v2, v1, s[{sWS}:{sWS+3}], s{sT0} offen")
        A("s_waitcnt vmcnt(0)")
        A("L_EXIT:")

def header():
    ref = open(f"cdna_kernels/{BASE}.s.ref").read().split("\n")
    out = []
    for l in ref:
        if l.startswith("; @launch"):
            out.append(f"; @launch grid=(256,1,1) block=(256,1,1) lds={LDS_BYTES}")
            break
        out.append(l)
    return "\n".join(out)

def build(stop=None, dumps=(), ts=False):
    g = Gen(stop=stop, dumps=dumps, ts=ts)
    g.body()
    g.finish()
    rep = {}
    lines = fix_hazards(g.lines, rep)
    txt = header() + f"""
.amdgcn_target "amdgcn-amd-amdhsa--gfx950"
.text
.globl {NAME}
.p2align 8
.type {NAME},@function
{NAME}:
""" + "\n".join(("    " + l if not l.endswith(":") else l) for l in lines) + f"""
    s_endpgm
.section .rodata,"a"
.p2align 6
.amdhsa_kernel {NAME}
  .amdhsa_next_free_vgpr 512
  .amdhsa_next_free_sgpr 102
  .amdhsa_accum_offset 256
  .amdhsa_group_segment_fixed_size 0
  .amdhsa_kernarg_size 80
  .amdhsa_user_sgpr_count 2
  .amdhsa_user_sgpr_kernarg_segment_ptr 1
  .amdhsa_system_sgpr_workgroup_id_x 1
.end_amdhsa_kernel
"""
    return txt, g.dbg, rep

if __name__ == "__main__":
    import argparse
    ap = argparse.ArgumentParser()
    ap.add_argument("-o", default=f"cdna_kernels/{BASE}.s")
    ap.add_argument("--stop", default=None)
    ap.add_argument("--dumps", default="")
    ap.add_argument("--ts", action="store_true")
    a_ = ap.parse_args()
    txt, dbg, rep = build(a_.stop, [d for d in a_.dumps.split(",") if d], a_.ts)
    open(a_.o, "w").write(txt)
    json.dump(dbg, open(a_.o + ".json", "w"))
    print("lines", txt.count("\n"), "nop states", rep)
```
